```python
import torch

def _softmax(x, axis=-1):
    return torch.softmax(x, dim=axis)

def _gelu(x):
    return torch.nn.functional.gelu(x, approximate='tanh')

def _silu(x):
    return torch.nn.functional.silu(x)

def _sigmoid(x):
    return torch.sigmoid(x)

def _layernorm(x, axis=-1, eps=1e-05):
    m = x.mean(dim=axis, keepdim=True)
    v = x.var(dim=axis, keepdim=True, unbiased=False)
    return (x - m) / torch.sqrt(v + eps)

def _scatter_add(tgt, idx, src, axis=0):
    return tgt.clone().index_add_(axis, idx, src)

def _segment_sum(src, seg, n):
    out = torch.zeros((n,) + src.shape[1:], dtype=src.dtype)
    return out.index_add_(0, seg, src)

def _pad(x, pw):
    flat = tuple((v for pair in reversed(pw) for v in pair))
    return torch.nn.functional.pad(x, flat)
kernel_name = 'parallel_sum__spectral_fnet__mixer_gmlp__prompt'

def setup_inputs():

    _w = lambda a: (lambda t: t.to(torch.bfloat16) if t.is_floating_point() else t)(torch.as_tensor(a))

    def _A_setup():
        B, S, D = (1, 2048, 640)
        ns = torch.arange(S)[:, None] * torch.arange(S)[None, :]
        nd = torch.arange(D)[:, None] * torch.arange(D)[None, :]
        Ws_re = torch.cos(-2.0 * torch.pi * ns / S).to(float)
        Ws_im = torch.sin(-2.0 * torch.pi * ns / S).to(float)
        Wd_re = torch.cos(-2.0 * torch.pi * nd / D).to(float)
        Wd_im = torch.sin(-2.0 * torch.pi * nd / D).to(float)
        return {'x': _w((lambda *s: torch.randn(*s, dtype=torch.bfloat16) * 0.05)(B, S, D)), 'dft_seq_re': _w(Ws_re), 'dft_seq_im': _w(Ws_im), 'dft_hid_re': _w(Wd_re), 'dft_hid_im': _w(Wd_im)}
    _A_in = _A_setup()

    def _B_setup():
        B, S, D, F = (1, 2048, 640, 1728)
        Fh = F // 2
        return {'x': _w((lambda *s: torch.randn(*s, dtype=torch.bfloat16) * 0.05)(B, S, D)), 'w_in': _w((lambda *s: torch.randn(*s, dtype=torch.bfloat16) * 0.8)(D, 2 * Fh)), 'w_sp': _w(0.01 * (lambda *s: torch.randn(*s, dtype=torch.bfloat16) * 0.8)(S, S)), 'b_sp': _w(1.0 + 0.01 * (lambda *s: torch.randn(*s, dtype=torch.bfloat16) * 0.8)(S)), 'w_out': _w((lambda *s: torch.randn(*s, dtype=torch.bfloat16) * 0.8)(Fh, D))}
    _B_in = _B_setup()
    return {'A_x': _A_in['x'], 'A_dft_seq_re': _A_in['dft_seq_re'], 'A_dft_seq_im': _A_in['dft_seq_im'], 'A_dft_hid_re': _A_in['dft_hid_re'], 'A_dft_hid_im': _A_in['dft_hid_im'], 'B_x': _B_in['x'], 'B_w_in': _B_in['w_in'], 'B_w_sp': _B_in['w_sp'], 'B_b_sp': _B_in['b_sp'], 'B_w_out': _B_in['w_out']}

def reference(A_x, A_dft_seq_re, A_dft_seq_im, A_dft_hid_re, A_dft_hid_im, B_x, B_w_in, B_w_sp, B_b_sp, B_w_out):

    def _A_ref(x, dft_seq_re, dft_seq_im, dft_hid_re, dft_hid_im):
        a = torch.einsum('bsd,ed->bse', x, dft_hid_re)
        b = torch.einsum('bsd,ed->bse', x, dft_hid_im)
        y = torch.einsum('ts,bse->bte', dft_seq_re, a) - torch.einsum('ts,bse->bte', dft_seq_im, b)
        return y

    def _B_ref(x, w_in, w_sp, b_sp, w_out):
        B, S, D = x.shape
        F = w_in.shape[-1]
        Fh = F // 2
        z = _gelu(torch.einsum('bsd,df->bsf', x, w_in))
        z1 = z[..., :Fh].clone()
        z2 = _layernorm(z[..., Fh:], axis=-1)
        g = torch.einsum('ts,bsf->btf', w_sp, z2) + b_sp[None, :, None]
        return torch.einsum('bsf,fd->bsd', z1 * g, w_out)
    x = A_x
    xn = _layernorm(x, axis=-1)
    return x + _A_ref(xn, A_dft_seq_re, A_dft_seq_im, A_dft_hid_re, A_dft_hid_im) + _B_ref(xn, B_w_in, B_w_sp, B_b_sp, B_w_out)
```

```python
class Asm:
    def __init__(self):
        self.lines = []
        self.nlabel = 0
    def __call__(self, s):
        for l in s.split('\n'):
            l = l.strip()
            if l: self.lines.append('  ' + l if not l.endswith(':') else l)
    def raw(self, s):
        self.lines.append(s)
    def label(self, base='L'):
        self.nlabel += 1
        return f'{base}_{self.nlabel}'
    def text(self):
        return '\n'.join(self.lines) + '\n'

def vr(i, n=1):
    return f'v{i}' if n == 1 else f'v[{i}:{i+n-1}]'
def ar(i, n=1):
    return f'a{i}' if n == 1 else f'a[{i}:{i+n-1}]'
def sr(i, n=1):
    return f's{i}' if n == 1 else f's[{i}:{i+n-1}]'

class RegAlloc:
    def __init__(self, start=0, limit=256):
        self.next = start; self.limit = limit; self.high = start
    def alloc(self, n=1, align=1):
        if n > 1 and align == 1: align = 2 if n >= 2 else 1
        i = (self.next + align - 1) // align * align
        self.next = i + n
        assert self.next <= self.limit, f'out of regs {self.next} > {self.limit}'
        self.high = max(self.high, self.next)
        return i
    def mark(self): return self.next
    def release(self, m): self.next = m

def kernel_header(name):
    return f""".globl {name}
.p2align 8
.type {name},@function
{name}:
"""

def kernel_desc(name, nvgpr, nsgpr, accum=None, wg_y=False):
    if accum is None:
        accum = (nvgpr + 3) // 4 * 4
    return f""".amdhsa_kernel {name}
  .amdhsa_next_free_vgpr {nvgpr}
  .amdhsa_next_free_sgpr {nsgpr}
  .amdhsa_accum_offset {accum}
  .amdhsa_group_segment_fixed_size 0
  .amdhsa_kernarg_size 104
  .amdhsa_user_sgpr_count 2
  .amdhsa_user_sgpr_kernarg_segment_ptr 1
  .amdhsa_system_sgpr_workgroup_id_x 1
{'  .amdhsa_system_sgpr_workgroup_id_y 1' if wg_y else ''}
  .amdhsa_float_denorm_mode_32 3
  .amdhsa_float_denorm_mode_16_64 3
.end_amdhsa_kernel
"""
```

```python
from asmlib import *

class GemmCfg:
    def __init__(self, **kw):
        self.m_kind = 'RC'
        self.ld_m = 0
        self.ld_n = 0
        self.nsteps = 16
        self.NS = 3
        self.srd_m = 8; self.srd_n = 12
        self.s_km = 20; self.s_kn = 21
        self.s_tmp = 22
        self.lds_base = 0
        self.unroll = True
        self.__dict__.update(kw)

STAGE = 32768
def emit_setup(A, c, va):
    r = {}
    lane = va.alloc(); wave = va.alloc(); t0 = va.alloc(); t1 = va.alloc(); t2 = va.alloc()
    r['lane'] = lane; r['wavev'] = wave
    A(f'v_and_b32 v{lane}, 63, v0')
    A(f'v_lshrrev_b32 v{wave}, 6, v0')
    A(f's_nop 0')
    A(f'v_readfirstlane_b32 s{c.s_wave}, v{wave}')
    r['dn'] = [va.alloc() for _ in range(4)]
    A(f'v_and_b32 v{t0}, 7, v{lane}')
    A(f'v_lshrrev_b32 v{t1}, 4, v{lane}')
    A(f'v_xor_b32 v{t0}, v{t0}, v{t1}')
    A(f'v_lshlrev_b32 v{t0}, 4, v{t0}')
    A(f'v_lshrrev_b32 v{t1}, 3, v{lane}')
    A(f'v_lshl_add_u32 v{t1}, v{wave}, 5, v{t1}')
    A(f's_mov_b32 s{c.s_tmp}, {c.ld_n}')
    A(f'v_mul_lo_u32 v{t1}, v{t1}, s{c.s_tmp}')
    A(f'v_add_u32 v{t1}, s{c.s_nbase}, v{t1}')
    for jj in range(4):
        d = r['dn'][jj]
        A(f'v_xor_b32 v{d}, {64 * (jj & 1)}, v{t0}')
        A(f'v_add_u32 v{d}, v{d}, v{t1}')
        off = 8 * jj * c.ld_n - 1024 * jj
        if off: A(f'v_add_u32 v{d}, {off}, v{d}')
    r['dm'] = [va.alloc() for _ in range(4)]
    if c.m_kind == 'KC':
        A(f'v_lshrrev_b32 v{t1}, 3, v{lane}')
        A(f'v_lshl_add_u32 v{t1}, v{wave}, 5, v{t1}')
        A(f's_mov_b32 s{c.s_tmp}, {c.ld_m}')
        A(f'v_mul_lo_u32 v{t1}, v{t1}, s{c.s_tmp}')
        A(f'v_add_u32 v{t1}, s{c.s_mbase}, v{t1}')
        for jj in range(4):
            d = r['dm'][jj]
            A(f'v_xor_b32 v{d}, {64 * (jj & 1)}, v{t0}')
            A(f'v_add_u32 v{d}, v{d}, v{t1}')
            off = 8 * jj * c.ld_m - 1024 * jj
            if off: A(f'v_add_u32 v{d}, {off}, v{d}')
    else:
        A(f'v_lshrrev_b32 v{t1}, 4, v{lane}')
        A(f'v_lshlrev_b32 v{t2}, 2, v{t1}')
        A(f'v_and_b32 v{t0}, 15, v{lane}')
        A(f'v_xor_b32 v{t0}, v{t0}, v{t2}')
        A(f'v_lshlrev_b32 v{t0}, 4, v{t0}')
        A(f'v_lshl_add_u32 v{t1}, v{wave}, 4, v{t1}')
        A(f's_mov_b32 s{c.s_tmp}, {c.ld_m}')
        A(f'v_mul_lo_u32 v{t1}, v{t1}, s{c.s_tmp}')
        A(f'v_add_u32 v{t1}, s{c.s_mbase}, v{t1}')
        A(f'v_add_u32 v{t1}, v{t1}, v{t0}')
        for jj in range(4):
            d = r['dm'][jj]
            off = 4 * jj * c.ld_m - 1024 * jj
            A(f'v_add_u32 v{d}, {off}, v{t1}')
    nsets = (c.NS + 1) // 2
    r['rn'] = [[va.alloc() for _ in range(4)] for _ in range(nsets)]
    A(f'v_and_b32 v{t0}, 31, v{lane}')
    A(f'v_lshrrev_b32 v{t1}, 1, v{t0}')
    A(f'v_and_b32 v{t1}, 7, v{t1}')
    A(f'v_lshrrev_b32 v{t2}, 5, v{lane}')
    A(f'v_xor_b32 v{t1}, v{t1}, v{t2}')
    A(f'v_lshlrev_b32 v{t1}, 4, v{t1}')
    A(f'v_lshl_add_u32 v{t1}, v{t0}, 7, v{t1}')
    A(f'v_and_b32 v{t2}, 1, v{wave}')
    A(f'v_lshl_add_u32 v{t2}, v{t2}, 13, v{t1}')
    for ks in range(4):
        d = r['rn'][0][ks]
        A(f'v_xor_b32 v{d}, {32 * ks}, v{t2}')
        A(f'v_add_u32 v{d}, {c.lds_base + 16384}, v{d}')
    r['rm'] = None
    if c.m_kind == 'KC':
        r['rm'] = [[va.alloc() for _ in range(4)] for _ in range(nsets)]
        A(f'v_lshrrev_b32 v{t2}, 1, v{wave}')
        A(f'v_lshl_add_u32 v{t2}, v{t2}, 13, v{t1}')
        for ks in range(4):
            d = r['rm'][0][ks]
            A(f'v_xor_b32 v{d}, {32 * ks}, v{t2}')
            if c.lds_base: A(f'v_add_u32 v{d}, {c.lds_base}, v{d}')
    else:
        r['rm'] = [[va.alloc() for _ in range(2)] for _ in range(nsets)]
        t3 = va.alloc(); t4 = va.alloc()
        A(f'v_bfe_u32 v{t0}, v{lane}, 2, 2')
        A(f'v_lshrrev_b32 v{t1}, 5, v{lane}')
        A(f'v_lshl_add_u32 v{t1}, v{t1}, 3, v{t0}')
        A(f'v_lshlrev_b32 v{t1}, 8, v{t1}')
        A(f'v_bfe_u32 v{t2}, v{lane}, 4, 1')
        A(f'v_lshlrev_b32 v{t2}, 1, v{t2}')
        A(f'v_bfe_u32 v{t3}, v{lane}, 1, 1')
        A(f'v_add_u32 v{t2}, v{t2}, v{t3}')
        A(f'v_lshl_add_u32 v{t1}, v{t2}, 4, v{t1}')
        A(f'v_and_b32 v{t3}, 1, v{lane}')
        A(f'v_lshl_add_u32 v{t1}, v{t3}, 3, v{t1}')
        A(f'v_lshrrev_b32 v{t3}, 1, v{wave}')
        A(f'v_lshlrev_b32 v{t3}, 1, v{t3}')
        for i in range(2):
            d = r['rm'][0][i]
            A(f'v_add_u32 v{t4}, {i}, v{t3}')
            A(f'v_xor_b32 v{t4}, v{t4}, v{t0}')
            A(f'v_lshl_add_u32 v{d}, v{t4}, 6, v{t1}')
            if c.lds_base: A(f'v_add_u32 v{d}, {c.lds_base}, v{d}')
    for s in range(1, nsets):
        for d0, d1 in zip(r['rn'][0], r['rn'][s]): A(f'v_add_u32 v{d1}, {65536 * s}, v{d0}')
        for d0, d1 in zip(r['rm'][0], r['rm'][s]): A(f'v_add_u32 v{d1}, {65536 * s}, v{d0}')
    return r

def dma_instrs(c, r, stage_buf):
    out = []
    base = stage_buf * STAGE
    l = []
    l.append(f's_add_u32 m0, s{c.s_ldsw}, {base}')
    for jj in range(4):
        l.append(f'buffer_load_dwordx4 v{r["dm"][jj]}, s[{c.srd_m}:{c.srd_m+3}], s{c.s_km} offen offset:{1024*jj} lds')
    l.append(f's_add_u32 m0, s{c.s_ldsw}, {base + 16384}')
    for jj in range(4):
        l.append(f'buffer_load_dwordx4 v{r["dn"][jj]}, s[{c.srd_n}:{c.srd_n+3}], s{c.s_kn} offen offset:{1024*jj} lds')
    l.append(f's_add_u32 s{c.s_km}, s{c.s_km}, {64 * c.ld_m if c.m_kind == "RC" else 128}')
    l.append(f's_add_u32 s{c.s_kn}, s{c.s_kn}, 128')
    return l

def frag_reads(c, r, F, stage_buf, ks):
    st = stage_buf // 2; so = (stage_buf % 2) * STAGE
    l = []
    if c.m_kind == 'RC':
        for i in range(2):
            a = r['rm'][st][i]
            o = so + ks * 16 * 256
            l.append([f'ds_read_b64_tr_b16 {vr(F["m"][i], 2)}, v{a} offset:{o}',
                      f'ds_read_b64_tr_b16 {vr(F["m"][i] + 2, 2)}, v{a} offset:{o + 1024}'])
    else:
        for i in range(2):
            l.append([f'ds_read_b128 {vr(F["m"][i], 4)}, v{r["rm"][st][ks]} offset:{so + i * 4096}'])
    n = []
    for i in range(2):
        n.append([f'ds_read_b128 {vr(F["n"][i], 4)}, v{r["rn"][st][ks]} offset:{so + i * 4096}'])
    return l[0] + n[0] + n[1] + l[1]

def emit_mainloop(A, c, r, acc, F2):
    NS = c.NS; n = c.nsteps
    pre = min(NS, n)
    for s in range(pre):
        for ins in dma_instrs(c, r, s): A(ins)
    if getattr(c, 'stamp_after_issue', None): A(c.stamp_after_issue)
    A(f's_waitcnt vmcnt({8 * (pre - 1)})')
    A('s_barrier')
    if getattr(c, 'stamp_after_first', None): A(c.stamp_after_first)
    for ins in frag_reads(c, r, F2[0], 0, 0): A(ins)
    pend = []
    first = True
    for i in range(n):
        b = i % NS
        for ks in range(4):
            F = F2[ks & 1]; Fn = F2[(ks + 1) & 1]
            A('s_waitcnt lgkmcnt(0)')
            mf = []
            for (mi, ni) in [(0, 0), (0, 1), (1, 0), (1, 1)]:
                srcc = '0' if (i == 0 and ks == 0 and not getattr(c, 'accumulate', False)) else vr(acc[mi][ni], 16)
                mf.append(f'v_mfma_f32_32x32x16_bf16 {vr(acc[mi][ni], 16)}, {vr(F["m"][mi], 4)}, {vr(F["n"][ni], 4)}, {srcc}')
            A(mf[0])
            if ks < 3:
                rd = frag_reads(c, r, Fn, b, ks + 1)
            else:
                rd = []
                if i + 1 < n:
                    last = min(i + NS - 1, n - 1)
                    A(f's_waitcnt vmcnt({8 * (last - (i + 1))})')
                    A('s_barrier')
                    rd = frag_reads(c, r, Fn, (i + 1) % NS, 0)
                    if i + NS < n:
                        assert not pend
                        pend = dma_instrs(c, r, b)
            h = (len(rd) + 1) // 2
            for x in rd[:h]: A(x)
            A(mf[1])
            for x in rd[h:]: A(x)
            A(mf[2])
            take = pend[:3]; pend = pend[3:]
            for x in take[:2]: A(x)
            A(mf[3])
            for x in take[2:]: A(x)
    assert not pend
```

```python
from asmlib import *
from gemm import *
import sys

KA = dict(x=0, cs=8, ss=16, cd=24, sd=32, bx=40, win=48, wsp=56, bsp=64, wout=72, out=80, dbg=88, ws=96)
WS_XN = 0
WS_Z = 0x400000
WS_AT = 0xC00000
WS_BT = 0x1000000
WS_Z2N = 0x1400000
WS_H = 0x1800000
WS_Y = 0x1C00000
ZLD = 1792 * 2

def srd(A, s, base_pair, off, size):
    if off:
        A(f's_add_u32 s{s}, s{base_pair}, {off}')
        A(f's_addc_u32 s{s+1}, s{base_pair+1}, 0')
    else:
        A(f's_mov_b32 s{s}, s{base_pair}')
        A(f's_mov_b32 s{s+1}, s{base_pair+1}')
    A(f's_mov_b32 s{s+2}, {size}')
    A(f's_mov_b32 s{s+3}, 0x20000')

def wave_reduce16(A, v, tmp=None):
    for mod in ['quad_perm:[1,0,3,2]', 'quad_perm:[2,3,0,1]', 'row_half_mirror', 'row_mirror']:
        A('s_nop 1')
        A(f'v_add_f32_dpp v{v}, v{v}, v{v} {mod} row_mask:0xf bank_mask:0xf')

def gelu_inplace(A, regs, tmp, sc):
    c1, c3 = sc
    for x, t in zip(regs, tmp): A(f'v_mul_f32 v{t}, v{x}, v{x}')
    for x, t in zip(regs, tmp): A(f'v_fma_f32 v{t}, v{t}, s{c3}, v{tmp[-1] if False else t}') if False else None
    for x, t in zip(regs, tmp): A(f'v_fma_f32 v{t}, v{t}, s{c3}, v{c1}')
    for x, t in zip(regs, tmp): A(f'v_mul_f32 v{t}, v{x}, v{t}')
    for x, t in zip(regs, tmp): A(f'v_exp_f32 v{t}, v{t}')
    for x, t in zip(regs, tmp): A(f'v_add_f32 v{t}, 1.0, v{t}')
    for x, t in zip(regs, tmp): A(f'v_rcp_f32 v{t}, v{t}')
    for x, t in zip(regs, tmp): A(f'v_mul_f32 v{x}, v{x}, v{t}')

def pack_swap(A, src16, dst8):
    for q in range(4):
        A(f'v_cvt_pk_bf16_f32 v{dst8 + 2*q}, v{src16 + 4*q}, v{src16 + 4*q + 1}')
        A(f'v_cvt_pk_bf16_f32 v{dst8 + 2*q + 1}, v{src16 + 4*q + 2}, v{src16 + 4*q + 3}')
    A('s_nop 1')
    for j in range(2):
        b = dst8 + 4 * j
        A(f'v_permlane32_swap_b32 v{b}, v{b + 2}')
        A(f'v_permlane32_swap_b32 v{b + 1}, v{b + 3}')

def out_addr(A, va, r, s_nrow0, ld, s_mcol0_bytes, esize):
    t0 = va.alloc(); t1 = va.alloc()
    A(f'v_and_b32 v{t0}, 31, v{r["lane"]}')
    A(f'v_and_b32 v{t1}, 1, v{r["wavev"]}')
    A(f'v_lshl_add_u32 v{t0}, v{t1}, 6, v{t0}')
    A(f'v_add_u32 v{t0}, s{s_nrow0}, v{t0}')
    A(f's_mov_b32 s60, {ld}')
    A(f'v_mul_lo_u32 v{t0}, v{t0}, s60')
    A(f'v_lshrrev_b32 v{t1}, 5, v{r["lane"]}')
    A(f'v_lshl_add_u32 v{t0}, v{t1}, 4, v{t0}')
    A(f'v_lshrrev_b32 v{t1}, 1, v{r["wavev"]}')
    A(f'v_lshl_add_u32 v{t0}, v{t1}, {6 + (1 if esize == 2 else 2)}, v{t0}')
    A(f'v_add_u32 v{t0}, s{s_mcol0_bytes}, v{t0}')
    return t0

A = Asm()
launches = []
descs = []

def gemm_regs():
    va = RegAlloc(1)
    acc = [[va.alloc(16, 4) for _ in range(2)] for _ in range(2)]
    F2 = [dict(m=[va.alloc(4, 4) for _ in range(2)], n=[va.alloc(4, 4) for _ in range(2)]) for _ in range(2)]
    return va, acc, F2

name = 'k0_kernel'
A.raw(kernel_header(name))
A('s_cmp_ge_u32 s2, 128\ns_cbranch_scc1 K0_end')
A(f's_load_dwordx2 s[4:5], s[0:1], {KA["x"]}')
A(f's_load_dwordx2 s[6:7], s[0:1], {KA["ws"]}')
A('s_waitcnt lgkmcnt(0)')
srd(A, 8, 4, 0, 2048 * 1280)
srd(A, 12, 6, WS_XN, 2048 * 1280)
A('v_lshrrev_b32 v1, 4, v0')
A('s_lshl_b32 s3, s2, 4')
A('v_add_u32 v1, s3, v1')
A('v_mul_u32_u24 v1, 1280, v1')
A('v_and_b32 v2, 15, v0')
A('v_lshl_add_u32 v1, v2, 4, v1')
for j in range(5): A(f'buffer_load_dwordx4 v[{8+4*j}:{11+4*j}], v1, s[8:11], 0 offen offset:{256*j}')
A('s_waitcnt vmcnt(0)')
for j in range(20):
    A(f'v_lshlrev_b32 v{32+2*j}, 16, v{8+j}')
    A(f'v_and_b32 v{33+2*j}, 0xffff0000, v{8+j}')
A('v_mov_b32 v3, 0')
for j in range(40): A(f'v_add_f32 v3, v3, v{32+j}')
wave_reduce16(A, 3)
A('v_mul_f32 v3, 1.0/640, v3') if False else A(f'v_mul_f32 v3, 0x3acccccd, v3')
for j in range(40): A(f'v_sub_f32 v{32+j}, v{32+j}, v3')
A('v_mov_b32 v4, 0')
for j in range(40): A(f'v_fmac_f32 v4, v{32+j}, v{32+j}')
wave_reduce16(A, 4)
A(f'v_mov_b32 v5, 0x3727c5ac')
A(f'v_fmac_f32 v5, 0x3acccccd, v4')
A('v_rsq_f32 v5, v5')
A('s_nop 0')
for j in range(40): A(f'v_mul_f32 v{32+j}, v{32+j}, v5')
for j in range(20): A(f'v_cvt_pk_bf16_f32 v{8+j}, v{32+2*j}, v{33+2*j}')
for j in range(5): A(f'buffer_store_dwordx4 v[{8+4*j}:{11+4*j}], v1, s[12:15], 0 offen offset:{256*j}')
A('s_waitcnt vmcnt(0)')
A('K0_end:\ns_endpgm')
launches.append((name, 128, 256, 0)); descs.append((name, 72, 32))

name = 'k1_kernel'
A.raw(kernel_header(name))
A('s_cmp_ge_u32 s2, 384\ns_cbranch_scc1 K1_end')
A(f's_load_dwordx2 s[4:5], s[0:1], {KA["win"]}')
A(f's_load_dwordx2 s[6:7], s[0:1], {KA["ws"]}')
A(f's_load_dwordx2 s[28:29], s[0:1], {KA["cd"]}')
A(f's_load_dwordx2 s[30:31], s[0:1], {KA["sd"]}')
A('s_waitcnt lgkmcnt(0)')
A('s_cmp_ge_u32 s2, 224\ns_cbranch_scc1 K1_dft')
c = GemmCfg(m_kind='RC', ld_m=3456, ld_n=1280, nsteps=10, NS=3, s_mbase=23, s_nbase=24, s_wave=25, s_ldsw=26)
srd(A, 8, 4, 0, 640 * 3456)
srd(A, 12, 6, WS_XN, 2048 * 1280)
srd(A, 16, 6, WS_Z, 2048 * ZLD)
A('s_and_b32 s33, s2, 15\ns_lshr_b32 s35, s2, 4')
A('s_lshl_b32 s23, s35, 8')
A('s_mul_i32 s24, s33, 128*1280')
A('s_mov_b32 s20, 0\ns_mov_b32 s21, 0')
va, acc, F2 = gemm_regs()
r = emit_setup(A, c, va)
A('s_lshl_b32 s26, s25, 12')
emit_mainloop(A, c, r, acc, F2)
A('s_lshl_b32 s33, s33, 7')
addr = out_addr(A, va, r, 33, ZLD, 23, 2)
import struct
def f2u(x): return struct.unpack('<I', struct.pack('<f', x))[0]
import math
C1 = -2.0 * math.sqrt(2.0 / math.pi) * math.log2(math.e); C3 = C1 * 0.044715
vc1 = va.alloc(); A(f'v_mov_b32 v{vc1}, {hex(f2u(C1))}'); A(f's_mov_b32 s61, {hex(f2u(C3))}')
tmp = [va.alloc() for _ in range(16)]
pk = va.alloc(8, 4)
A('s_nop 7')
for mi in range(2):
    for ni in range(2):
        gelu_inplace(A, list(range(acc[mi][ni], acc[mi][ni] + 16)), tmp, (vc1, 61))
        pack_swap(A, acc[mi][ni], pk)
        A(f's_mov_b32 s62, {ni * 32 * ZLD}')
        for j in range(2):
            A(f'buffer_store_dwordx4 {vr(pk + 4*j, 4)}, v{addr}, s[16:19], s62 offen offset:{64*mi + 32*j}')
        A('s_nop 1')
A('s_waitcnt vmcnt(0)\ns_endpgm')
hi1 = va.high
A('K1_dft:')
c = GemmCfg(m_kind='KC', ld_m=1280, ld_n=1280, nsteps=10, NS=3, s_mbase=23, s_nbase=24, s_wave=25, s_ldsw=26)
A('s_sub_u32 s34, s2, 224')
A('s_cmp_ge_u32 s34, 80')
A('s_cselect_b32 s4, s30, s28\ns_cselect_b32 s5, s31, s29')
A(f's_cselect_b32 s36, {WS_BT - WS_AT}, 0')
A('s_cselect_b32 s37, 80, 0')
A('s_cselect_b32 s63, 0x80008000, 0')
A('s_sub_u32 s34, s34, s37')
A(f's_add_u32 s36, s36, {WS_AT}')
A('s_and_b32 s33, s34, 15\ns_lshr_b32 s35, s34, 4')
srd(A, 8, 6, WS_XN, 2048 * 1280)
srd(A, 12, 4, 0, 640 * 1280)
A('s_add_u32 s16, s6, s36\ns_addc_u32 s17, s7, 0\ns_mov_b32 s18, 640*4096\ns_mov_b32 s19, 0x20000')
A('s_mul_i32 s23, s33, 128*1280')
A('s_mul_i32 s24, s35, 128*1280')
A('s_mov_b32 s20, 0\ns_mov_b32 s21, 0')
va, acc, F2 = gemm_regs()
r = emit_setup(A, c, va)
A('s_lshl_b32 s26, s25, 12')
emit_mainloop(A, c, r, acc, F2)
A('s_lshl_b32 s35, s35, 7')
A('s_lshl_b32 s33, s33, 8')
addr = out_addr(A, va, r, 35, 4096, 33, 2)
pk = va.alloc(8, 4)
A('s_nop 7')
for mi in range(2):
    for ni in range(2):
        pack_swap(A, acc[mi][ni], pk)
        A('s_nop 1')
        for q in range(8): A(f'v_xor_b32 v{pk+q}, s63, v{pk+q}')
        A(f's_mov_b32 s62, {ni * 32 * 4096}')
        for j in range(2):
            A(f'buffer_store_dwordx4 {vr(pk + 4*j, 4)}, v{addr}, s[16:19], s62 offen offset:{64*mi + 32*j}')
        A('s_nop 1')
A('s_waitcnt vmcnt(0)')
A('K1_end:\ns_endpgm')
launches.append((name, 384, 256, 3 * 32768)); descs.append((name, max(hi1, va.high), 64))

name = 'k2_kernel'
A.raw(kernel_header(name))
A('s_cmp_ge_u32 s2, 512\ns_cbranch_scc1 K2_end')
A(f's_load_dwordx2 s[6:7], s[0:1], {KA["ws"]}')
A('s_waitcnt lgkmcnt(0)')
srd(A, 8, 6, WS_Z, 2048 * ZLD)
srd(A, 12, 6, WS_Z2N, 2048 * 1728)
A('v_lshrrev_b32 v1, 6, v0')
A('s_lshl_b32 s3, s2, 2')
A('v_add_u32 v1, s3, v1')
A('v_and_b32 v2, 63, v0')
A(f's_mov_b32 s4, {ZLD}')
A('v_mul_lo_u32 v3, v1, s4')
A('v_lshl_add_u32 v3, v2, 4, v3')
A('v_add_u32 v3, 1728, v3')
A('v_mul_u32_u24 v4, 1728, v1')
A('v_lshl_add_u32 v4, v2, 4, v4')
A('v_cmp_gt_u32 vcc, 54, v2')
A('s_and_saveexec_b64 s[20:21], vcc')
A('buffer_load_dwordx4 v[8:11], v3, s[8:11], 0 offen')
A('buffer_load_dwordx4 v[12:15], v3, s[8:11], 0 offen offset:864')
A('s_mov_b64 exec, s[20:21]')
A('s_waitcnt vmcnt(0)')
for j in range(8):
    A(f'v_lshlrev_b32 v{32+2*j}, 16, v{8+j}')
    A(f'v_and_b32 v{33+2*j}, 0xffff0000, v{8+j}')
for j in range(16): A(f'v_cndmask_b32 v{32+j}, 0, v{32+j}, vcc')
A('v_mov_b32 v5, 0')
for j in range(16): A(f'v_add_f32 v5, v5, v{32+j}')
def wave_reduce64(v):
    wave_reduce16(A, v)
    A('s_nop 1')
    A(f'v_readlane_b32 s24, v{v}, 0\nv_readlane_b32 s25, v{v}, 16\nv_readlane_b32 s26, v{v}, 32\nv_readlane_b32 s27, v{v}, 48')
    A('s_nop 1')
    A(f'v_mov_b32 v{v}, s24\nv_add_f32 v{v}, s25, v{v}\nv_add_f32 v{v}, s26, v{v}\nv_add_f32 v{v}, s27, v{v}')
wave_reduce64(5)
A(f'v_mul_f32 v5, {hex(f2u(1/864))}, v5')
for j in range(16): A(f'v_sub_f32 v{32+j}, v{32+j}, v5')
for j in range(16): A(f'v_cndmask_b32 v{32+j}, 0, v{32+j}, vcc')
A('v_mov_b32 v6, 0')
for j in range(16): A(f'v_fmac_f32 v6, v{32+j}, v{32+j}')
wave_reduce64(6)
A(f'v_mov_b32 v7, 0x3727c5ac')
A(f'v_fmac_f32 v7, {hex(f2u(1/864))}, v6')
A('v_rsq_f32 v7, v7')
A('s_nop 0')
for j in range(16): A(f'v_mul_f32 v{32+j}, v{32+j}, v7')
for j in range(8): A(f'v_cvt_pk_bf16_f32 v{8+j}, v{32+2*j}, v{33+2*j}')
A('s_and_saveexec_b64 s[20:21], vcc')
A('buffer_store_dwordx4 v[8:11], v4, s[12:15], 0 offen')
A('buffer_store_dwordx4 v[12:15], v4, s[12:15], 0 offen offset:864')
A('s_waitcnt vmcnt(0)')
A('K2_end:\ns_endpgm')
launches.append((name, 512, 256, 0)); descs.append((name, 64, 32))

name = 'k3_kernel'
A.raw(kernel_header(name))
A('s_cmp_ge_u32 s2, 192\ns_cbranch_scc1 K3_end')
A(f's_load_dwordx2 s[4:5], s[0:1], {KA["wsp"]}')
A(f's_load_dwordx2 s[6:7], s[0:1], {KA["ws"]}')
A(f's_load_dwordx2 s[28:29], s[0:1], {KA["cs"]}')
A(f's_load_dwordx2 s[30:31], s[0:1], {KA["ss"]}')
A(f's_load_dwordx2 s[38:39], s[0:1], {KA["bsp"]}')
A('s_waitcnt lgkmcnt(0)')
A('s_cmp_ge_u32 s2, 112\ns_cbranch_scc1 K3_dft')
c = GemmCfg(m_kind='RC', ld_m=1728, ld_n=4096, nsteps=32, NS=3, s_mbase=23, s_nbase=24, s_wave=25, s_ldsw=26)
srd(A, 8, 6, WS_Z2N, 2048 * 1728)
srd(A, 12, 4, 0, 2048 * 4096)
srd(A, 16, 6, WS_H, 2048 * 1792)
srd(A, 40, 6, WS_Z, 2048 * ZLD)
srd(A, 44, 38, 0, 4096)
A('s_and_b32 s33, s2, 15\ns_lshr_b32 s35, s2, 4')
A('s_lshl_b32 s23, s35, 8')
A('s_lshl_b32 s24, s33, 19')
A('s_mov_b32 s20, 0\ns_mov_b32 s21, 0')
va, acc, F2 = gemm_regs()
r = emit_setup(A, c, va)
A('s_lshl_b32 s26, s25, 12')
emit_mainloop(A, c, r, acc, F2)
A('s_lshl_b32 s33, s33, 7')
addr_h = out_addr(A, va, r, 33, 1792, 23, 2)
addr_z = out_addr(A, va, r, 33, ZLD, 23, 2)
tb = va.alloc(); t1 = va.alloc(); bias = [va.alloc(), va.alloc()]
A(f'v_and_b32 v{tb}, 31, v{r["lane"]}')
A(f'v_and_b32 v{t1}, 1, v{r["wavev"]}')
A(f'v_lshl_add_u32 v{tb}, v{t1}, 6, v{tb}')
A(f'v_add_u32 v{tb}, s33, v{tb}')
A(f'v_lshlrev_b32 v{tb}, 1, v{tb}')
A(f'buffer_load_ushort v{bias[0]}, v{tb}, s[44:47], 0 offen')
A(f'buffer_load_ushort v{bias[1]}, v{tb}, s[44:47], 0 offen offset:64')
A('s_waitcnt vmcnt(0)')
for b in bias: A(f'v_lshlrev_b32 v{b}, 16, v{b}')
zz = va.alloc(8, 4); pk = va.alloc(8, 4); tz = va.alloc(16, 4)
for mi in range(2):
    for ni in range(2):
        A(f's_mov_b32 s62, {ni * 32 * ZLD}')
        for j in range(2):
            A(f'buffer_load_dwordx4 {vr(zz + 4*j, 4)}, v{addr_z}, s[40:43], s62 offen offset:{64*mi + 32*j}')
        A('s_waitcnt vmcnt(0)')
        for j in range(2):
            b = zz + 4 * j
            A(f'v_permlane32_swap_b32 v{b}, v{b + 2}')
            A(f'v_permlane32_swap_b32 v{b + 1}, v{b + 3}')
        A('s_nop 1')
        for q in range(8):
            A(f'v_lshlrev_b32 v{tz + 2*q}, 16, v{zz + q}')
            A(f'v_and_b32 v{tz + 2*q + 1}, 0xffff0000, v{zz + q}')
        a0 = acc[mi][ni]
        for q in range(16):
            A(f'v_add_f32 v{a0 + q}, v{a0 + q}, v{bias[ni]}')
            A(f'v_mul_f32 v{a0 + q}, v{a0 + q}, v{tz + q}')
        pack_swap(A, a0, pk)
        A(f's_mov_b32 s62, {ni * 32 * 1792}')
        for j in range(2):
            A(f'buffer_store_dwordx4 {vr(pk + 4*j, 4)}, v{addr_h}, s[16:19], s62 offen offset:{64*mi + 32*j}')
        A('s_nop 1')
A('s_waitcnt vmcnt(0)\ns_endpgm')
hi3 = va.high
A('K3_dft:')
A('s_sub_u32 s34, s2, 112')
A('s_and_b32 s33, s34, 15\ns_lshr_b32 s35, s34, 4')
c = GemmCfg(m_kind='KC', ld_m=4096, ld_n=4096, nsteps=32, NS=3, s_mbase=23, s_nbase=24, s_wave=25, s_ldsw=26)
srd(A, 8, 6, WS_AT, 640 * 4096)
srd(A, 12, 28, 0, 2048 * 4096)
srd(A, 16, 6, WS_Y, 2048 * 2560)
A('s_lshl_b32 s23, s35, 19')
A('s_lshl_b32 s24, s33, 19')
A('s_mov_b32 s20, 0\ns_mov_b32 s21, 0')
va, acc, F2 = gemm_regs()
r = emit_setup(A, c, va)
A('s_lshl_b32 s26, s25, 12')
emit_mainloop(A, c, r, acc, F2)
A('s_barrier')
srd(A, 8, 6, WS_BT, 640 * 4096)
srd(A, 12, 30, 0, 2048 * 4096)
A('s_mov_b32 s20, 0\ns_mov_b32 s21, 0')
c.accumulate = True
emit_mainloop(A, c, r, acc, F2)
A('s_lshl_b32 s33, s33, 7')
A('s_lshl_b32 s35, s35, 9')
addr = out_addr(A, va, r, 33, 2560, 35, 4)
A('s_nop 15')
for mi in range(2):
    for ni in range(2):
        A(f's_mov_b32 s62, {ni * 32 * 2560}')
        for q in range(4):
            A(f'buffer_store_dwordx4 {vr(acc[mi][ni] + 4*q, 4)}, v{addr}, s[16:19], s62 offen offset:{128*mi + 32*q}')
A('s_waitcnt vmcnt(0)')
A('K3_end:\ns_endpgm')
launches.append((name, 192, 256, 3 * 32768)); descs.append((name, max(hi3, va.high), 64))

name = 'k4_kernel'
A.raw(kernel_header(name))
A('s_cmp_ge_u32 s2, 80\ns_cbranch_scc1 K4_end')
A(f's_load_dwordx2 s[4:5], s[0:1], {KA["wout"]}')
A(f's_load_dwordx2 s[6:7], s[0:1], {KA["ws"]}')
A(f's_load_dwordx2 s[28:29], s[0:1], {KA["x"]}')
A(f's_load_dwordx2 s[30:31], s[0:1], {KA["out"]}')
A('s_waitcnt lgkmcnt(0)')
c = GemmCfg(m_kind='RC', ld_m=1280, ld_n=1792, nsteps=14, NS=3, s_mbase=23, s_nbase=24, s_wave=25, s_ldsw=26)
srd(A, 8, 4, 0, 864 * 1280)
srd(A, 12, 6, WS_H, 2048 * 1792)
srd(A, 16, 30, 0, 2048 * 1280)
srd(A, 40, 28, 0, 2048 * 1280)
srd(A, 44, 6, WS_Y, 2048 * 2560)
A('s_and_b32 s33, s2, 15\ns_lshr_b32 s35, s2, 4')
A('s_lshl_b32 s23, s35, 8')
A('s_mul_i32 s24, s33, 128*1792')
A('s_mov_b32 s20, 0\ns_mov_b32 s21, 0')
va, acc, F2 = gemm_regs()
r = emit_setup(A, c, va)
A('s_lshl_b32 s26, s25, 12')
emit_mainloop(A, c, r, acc, F2)
A('s_lshl_b32 s33, s33, 7')
addr_o = out_addr(A, va, r, 33, 1280, 23, 2)
A('s_lshl_b32 s35, s35, 9')
addr_y = out_addr(A, va, r, 33, 2560, 35, 4)
zz = va.alloc(8, 4); pk = va.alloc(8, 4); tz = va.alloc(16, 4); yy = va.alloc(16, 4)
for mi in range(2):
    for ni in range(2):
        A(f's_mov_b32 s62, {ni * 32 * 1280}')
        for j in range(2):
            A(f'buffer_load_dwordx4 {vr(zz + 4*j, 4)}, v{addr_o}, s[40:43], s62 offen offset:{64*mi + 32*j}')
        A(f's_mov_b32 s63, {ni * 32 * 2560}')
        for q in range(4):
            A(f'buffer_load_dwordx4 {vr(yy + 4*q, 4)}, v{addr_y}, s[44:47], s63 offen offset:{128*mi + 32*q}')
        A('s_waitcnt vmcnt(0)')
        for j in range(2):
            b = zz + 4 * j
            A(f'v_permlane32_swap_b32 v{b}, v{b + 2}')
            A(f'v_permlane32_swap_b32 v{b + 1}, v{b + 3}')
        A('s_nop 1')
        for q in range(8):
            A(f'v_lshlrev_b32 v{tz + 2*q}, 16, v{zz + q}')
            A(f'v_and_b32 v{tz + 2*q + 1}, 0xffff0000, v{zz + q}')
        a0 = acc[mi][ni]
        for q in range(16):
            A(f'v_add_f32 v{a0 + q}, v{a0 + q}, v{yy + q}')
            A(f'v_add_f32 v{a0 + q}, v{a0 + q}, v{tz + q}')
        pack_swap(A, a0, pk)
        for j in range(2):
            A(f'buffer_store_dwordx4 {vr(pk + 4*j, 4)}, v{addr_o}, s[16:19], s62 offen offset:{64*mi + 32*j}')
        A('s_nop 1')
A('s_waitcnt vmcnt(0)')
A('K4_end:\ns_endpgm')
launches.append((name, 80, 256, 3 * 32768)); descs.append((name, va.high, 64))

extra = int(sys.argv[2]) if len(sys.argv) > 2 else 0
if extra:
    name = 'nop_kernel'
    A.raw(kernel_header(name)); A('s_endpgm')
    descs.append((name, 8, 16))
    for i in range(extra): launches.append((name, 256, 256, 0))

out = ''
for (n, g, b, l) in launches: out += f'; @launch kernel={n} grid=({g},1,1) block=({b},1,1) lds={l}\n'
out += '.amdgcn_target "amdgcn-amd-amdhsa--gfx950"\n.text\n' + A.text()
out += '.section .rodata,"a"\n'
for (n, v, s) in descs: out += '.p2align 6\n' + kernel_desc(n, v, s)
open(sys.argv[1], 'w').write(out)
print('generated', sys.argv[1], descs)
```

```python
from asmlib import *
import struct, math

def f2u(x): return struct.unpack('<I', struct.pack('<f', x))[0]

def srd(A, s, base_pair, off, size):
    if off:
        A(f's_add_u32 s{s}, s{base_pair}, {off}')
        A(f's_addc_u32 s{s+1}, s{base_pair+1}, 0')
    else:
        A(f's_mov_b32 s{s}, s{base_pair}')
        A(f's_mov_b32 s{s+1}, s{base_pair+1}')
    A(f's_mov_b32 s{s+2}, {size}')
    A(f's_mov_b32 s{s+3}, 0x20000')

class Ctx:
    def __init__(self, A, vstart=1):
        self.A = A
        self.va = RegAlloc(vstart)
        self.lane = self.va.alloc(); self.wave = self.va.alloc()
        self.t = [self.va.alloc() for _ in range(6)]
    def init_ids(self, s_wave):
        A = self.A
        A(f'v_and_b32 v{self.lane}, 63, v0')
        A(f'v_lshrrev_b32 v{self.wave}, 6, v0')
        A('s_nop 0')
        A(f'v_readfirstlane_b32 s{s_wave}, v{self.wave}')
        self.s_wave = s_wave

class Operand:
    def __init__(self, name, kind, rows, lds_off, srd, s_k, kstep):
        self.name = name; self.kind = kind; self.rows = rows; self.lds_off = lds_off
        self.srd = srd; self.s_k = s_k; self.kstep = kstep
        self.bytes = rows * 128
        assert self.bytes % 4096 == 0, (name, rows)
        self.nper = self.bytes // 4096
        self.voffs = None
        self.raddr = None

def kc_lane_rc(A, cx, op, jj, v_row, v_chunk):
    n = op.nper; t = cx.t
    A(f'v_mul_u32_u24 v{v_row}, {8*n}, v{cx.wave}')
    A(f'v_lshrrev_b32 v{v_chunk}, 3, v{cx.lane}')
    A(f'v_add3_u32 v{v_row}, v{v_row}, v{v_chunk}, {8*jj}') if 8*jj <= 64 else (A(f'v_add_u32 v{v_row}, v{v_row}, v{v_chunk}'), A(f'v_add_u32 v{v_row}, {8*jj}, v{v_row}'))
    A(f'v_bfe_u32 v{v_chunk}, v{v_row}, 1, 3')
    A(f'v_and_b32 v{t[5]}, 7, v{cx.lane}')
    A(f'v_xor_b32 v{v_chunk}, v{v_chunk}, v{t[5]}')

def setup_kc_dma(A, cx, op, rowaddr):
    op.voffs = []
    for jj in range(op.nper):
        d = cx.va.alloc(); op.voffs.append(d)
        kc_lane_rc(A, cx, op, jj, cx.t[0], cx.t[1])
        rowaddr(cx.t[0], cx.t[1], d)
        g = jj % 4
        if g: A(f'v_subrev_u32 v{d}, {1024*g}, v{d}')

def setup_rc_dma(A, cx, op, addr):
    op.voffs = []
    npc = op.rows // 8
    t = cx.t
    for jj in range(op.nper):
        d = cx.va.alloc(); op.voffs.append(d)
        sh = npc.bit_length() - 1
        assert (1 << sh) == npc
        A(f'v_mul_u32_u24 v{t[0]}, {64*op.nper}, v{cx.wave}')
        A(f'v_add_u32 v{t[0]}, v{t[0]}, v{cx.lane}')
        if jj: A(f'v_add_u32 v{t[0]}, {64*jj}, v{t[0]}')
        A(f'v_and_b32 v{t[1]}, {npc-1}, v{t[0]}')
        A(f'v_lshrrev_b32 v{t[0]}, {sh}, v{t[0]}')
        if npc == 16:
            A(f'v_and_b32 v{t[5]}, 3, v{t[0]}')
            A(f'v_lshlrev_b32 v{t[5]}, 2, v{t[5]}')
            A(f'v_xor_b32 v{t[1]}, v{t[1]}, v{t[5]}')
        elif npc == 8:
            A(f'v_bfe_u32 v{t[5]}, v{t[0]}, 1, 1')
            A(f'v_lshlrev_b32 v{t[5]}, 2, v{t[5]}')
            A(f'v_xor_b32 v{t[1]}, v{t[1]}, v{t[5]}')
        else:
            raise NotImplementedError
        addr(t[0], t[1], d)
        g = jj % 4
        if g: A(f'v_subrev_u32 v{d}, {1024*g}, v{d}')

def setup_rp_dma(A, cx, op, addr):
    op.voffs = []
    npc = op.rows // 8
    t = cx.t
    sh = (npc * 8).bit_length() - 1
    assert (1 << sh) == npc * 8
    for jj in range(op.nper):
        d = cx.va.alloc(); op.voffs.append(d)
        A(f'v_mul_u32_u24 v{t[0]}, {64*op.nper}, v{cx.wave}')
        A(f'v_add_u32 v{t[0]}, v{t[0]}, v{cx.lane}')
        if jj: A(f'v_add_u32 v{t[0]}, {64*jj}, v{t[0]}')
        A(f'v_bfe_u32 v{t[1]}, v{t[0]}, 3, {sh-3}')
        A(f'v_and_b32 v{t[2]}, 7, v{t[0]}')
        A(f'v_lshrrev_b32 v{t[0]}, {sh}, v{t[0]}')
        A(f'v_bfe_u32 v{t[5]}, v{t[1]}, 1, 1')
        A(f'v_lshlrev_b32 v{t[5]}, 2, v{t[5]}')
        A(f'v_xor_b32 v{t[2]}, v{t[2]}, v{t[5]}')
        A(f'v_lshl_add_u32 v{t[0]}, v{t[0]}, 3, v{t[2]}')
        addr(t[0], t[1], d)
        g = jj % 4
        if g: A(f'v_subrev_u32 v{d}, {1024*g}, v{d}')

def dma_items(op, s_ldsw_op, base, stage=0):
    l = []
    srd_ = op.srd(stage) if callable(op.srd) else op.srd
    for jj in range(op.nper):
        g = jj % 4
        if g == 0:
            l.append(f's_add_u32 m0, s{s_ldsw_op}, {base + op.lds_off + 1024*jj}')
        l.append(f'buffer_load_dwordx4 v{op.voffs[jj]}, s[{srd_}:{srd_+3}], s{op.s_k} offen offset:{1024*g} lds')
    return l

def setup_kc_read32(A, cx, op, v_row0, nsets, setsize, lds_base):
    t = cx.t
    A(f'v_and_b32 v{t[0]}, 31, v{cx.lane}')
    A(f'v_bfe_u32 v{t[1]}, v{cx.lane}, 1, 3')
    A(f'v_lshrrev_b32 v{t[2]}, 5, v{cx.lane}')
    A(f'v_xor_b32 v{t[1]}, v{t[1]}, v{t[2]}')
    A(f'v_lshlrev_b32 v{t[1]}, 4, v{t[1]}')
    A(f'v_add_u32 v{t[0]}, v{t[0]}, v{v_row0}')
    A(f'v_lshl_add_u32 v{t[1]}, v{t[0]}, 7, v{t[1]}')
    op.raddr = [[cx.va.alloc() for _ in range(4)] for _ in range(nsets)]
    for ks in range(4):
        d = op.raddr[0][ks]
        A(f'v_xor_b32 v{d}, {32*ks}, v{t[1]}')
        A(f'v_add_u32 v{d}, {lds_base + op.lds_off}, v{d}')
    for s in range(1, nsets):
        for ks in range(4): A(f'v_add_u32 v{op.raddr[s][ks]}, {setsize*s}, v{op.raddr[0][ks]}')

def kc_read32(op, st, so, ks, tile, dst):
    return [f'ds_read_b128 {vr(dst, 4)}, v{op.raddr[st][ks]} offset:{so + tile*4096}']

def setup_rc_read32(A, cx, op, v_mt0, ntiles, nsets, setsize, lds_base):
    t = cx.t
    npc = op.rows // 8; rowb = op.rows * 2
    op.rowb = rowb
    A(f'v_bfe_u32 v{t[0]}, v{cx.lane}, 2, 2')
    A(f'v_lshrrev_b32 v{t[1]}, 5, v{cx.lane}')
    A(f'v_lshl_add_u32 v{t[1]}, v{t[1]}, 3, v{t[0]}')
    A(f'v_mul_u32_u24 v{t[1]}, {rowb}, v{t[1]}')
    A(f'v_bfe_u32 v{t[2]}, v{cx.lane}, 4, 1')
    A(f'v_bfe_u32 v{t[3]}, v{cx.lane}, 1, 1')
    A(f'v_lshl_add_u32 v{t[2]}, v{t[2]}, 1, v{t[3]}')
    A(f'v_lshl_add_u32 v{t[1]}, v{t[2]}, 4, v{t[1]}')
    A(f'v_and_b32 v{t[3]}, 1, v{cx.lane}')
    A(f'v_lshl_add_u32 v{t[1]}, v{t[3]}, 3, v{t[1]}')
    op.raddr = [[cx.va.alloc() for _ in range(ntiles)] for _ in range(nsets)]
    for i in range(ntiles):
        d = op.raddr[0][i]
        A(f'v_add_u32 v{t[4]}, {i}, v{v_mt0}')
        if npc == 16:
            A(f'v_xor_b32 v{t[4]}, v{t[4]}, v{t[0]}')
        else:
            A(f'v_lshrrev_b32 v{t[5]}, 1, v{t[0]}')
            A(f'v_xor_b32 v{t[4]}, v{t[4]}, v{t[5]}')
        A(f'v_lshl_add_u32 v{d}, v{t[4]}, 6, v{t[1]}')
        if lds_base + op.lds_off: A(f'v_add_u32 v{d}, {lds_base + op.lds_off}, v{d}')
    for s in range(1, nsets):
        for i in range(ntiles): A(f'v_add_u32 v{op.raddr[s][i]}, {setsize*s}, v{op.raddr[0][i]}')

def rc_read32(op, st, so, ks, tile, dst):
    a = op.raddr[st][tile]; o = so + ks * 16 * op.rowb
    return [f'ds_read_b64_tr_b16 {vr(dst, 2)}, v{a} offset:{o}',
            f'ds_read_b64_tr_b16 {vr(dst + 2, 2)}, v{a} offset:{o + 4*op.rowb}']

def setup_rp_read32(A, cx, op, v_mt0, ntiles, nsets, setsize, lds_base):
    t = cx.t
    npc = op.rows // 8; G = npc * 128
    op.G = G
    A(f'v_lshrrev_b32 v{t[1]}, 5, v{cx.lane}')
    A(f'v_mul_u32_u24 v{t[1]}, {G}, v{t[1]}')
    A(f'v_bfe_u32 v{t[2]}, v{cx.lane}, 4, 1')
    A(f'v_bfe_u32 v{t[3]}, v{cx.lane}, 1, 1')
    A(f'v_lshl_add_u32 v{t[3]}, v{t[2]}, 1, v{t[3]}')
    A(f'v_lshl_add_u32 v{t[1]}, v{t[3]}, 7, v{t[1]}')
    A(f'v_bfe_u32 v{t[0]}, v{cx.lane}, 2, 2')
    A(f'v_lshl_add_u32 v{t[0]}, v{t[2]}, 2, v{t[0]}')
    A(f'v_lshl_add_u32 v{t[1]}, v{t[0]}, 4, v{t[1]}')
    A(f'v_and_b32 v{t[3]}, 1, v{cx.lane}')
    A(f'v_lshl_add_u32 v{t[1]}, v{t[3]}, 3, v{t[1]}')
    op.raddr = [[(cx.va.alloc(), cx.va.alloc()) for _ in range(ntiles)] for _ in range(nsets)]
    for i in range(ntiles):
        d, d2 = op.raddr[0][i]
        A(f'v_add_u32 v{t[4]}, {i}, v{v_mt0}')
        A(f'v_lshl_add_u32 v{d}, v{t[4]}, 9, v{t[1]}')
        if lds_base + op.lds_off: A(f'v_add_u32 v{d}, {lds_base + op.lds_off}, v{d}')
        A(f'v_xor_b32 v{d2}, 64, v{d}')
    for s in range(1, nsets):
        for i in range(ntiles):
            for h in range(2): A(f'v_add_u32 v{op.raddr[s][i][h]}, {setsize*s}, v{op.raddr[0][i][h]}')

def rp_read32(op, st, so, ks, tile, dst):
    a, a2 = op.raddr[st][tile]; o = so + ks * 2 * op.G
    return [f'ds_read_b64_tr_b16 {vr(dst, 2)}, v{a} offset:{o}',
            f'ds_read_b64_tr_b16 {vr(dst + 2, 2)}, v{a2} offset:{o}']

READ32 = {'KC': kc_read32, 'RC': rc_read32, 'RP': rp_read32}

def setup_kc_read16(A, cx, op, v_row0, nsets, setsize, lds_base):
    t = cx.t
    A(f'v_and_b32 v{t[0]}, 15, v{cx.lane}')
    A(f'v_add_u32 v{t[0]}, v{t[0]}, v{v_row0}')
    A(f'v_bfe_u32 v{t[1]}, v{t[0]}, 1, 3')
    A(f'v_lshrrev_b32 v{t[2]}, 4, v{cx.lane}')
    A(f'v_xor_b32 v{t[1]}, v{t[1]}, v{t[2]}')
    A(f'v_lshlrev_b32 v{t[1]}, 4, v{t[1]}')
    A(f'v_lshl_add_u32 v{t[1]}, v{t[0]}, 7, v{t[1]}')
    op.raddr = [[cx.va.alloc() for _ in range(2)] for _ in range(nsets)]
    for ks in range(2):
        d = op.raddr[0][ks]
        A(f'v_xor_b32 v{d}, {64*ks}, v{t[1]}')
        if lds_base + op.lds_off: A(f'v_add_u32 v{d}, {lds_base + op.lds_off}, v{d}')
    for s_ in range(1, nsets):
        for ks in range(2): A(f'v_add_u32 v{op.raddr[s_][ks]}, {setsize*s_}, v{op.raddr[0][ks]}')

def kc_read16(op, st, so, ks, tile, dst):
    return [f'ds_read_b128 {vr(dst, 4)}, v{op.raddr[st][ks]} offset:{so + tile*2048}']
READ16 = {'KC': kc_read16}

class Loop:
    def __init__(self, A, cx, ops, stage_bytes, NS, lds_base, s_ldsw):
        self.A = A; self.cx = cx; self.ops = ops; self.SB = stage_bytes; self.NS = NS; self.lds_base = lds_base
        self.s_ldsw = s_ldsw
        self.per_set = max(1, 65536 // stage_bytes)
        self.nsets = (NS + self.per_set - 1) // self.per_set
        self.setsize = self.per_set * stage_bytes
        self.stamp_first = None; self.stamp_issue = None
    def stage_dma(self, stage):
        buf = stage % self.NS
        l = []
        for op in self.ops:
            l += dma_items(op, self.s_ldsw[op.name], self.lds_base + buf * self.SB, stage)
        for op in self.ops:
            ks_ = op.kstep(stage) if callable(op.kstep) else op.kstep
            if ks_ >= 0: l.append(f's_add_u32 s{op.s_k}, s{op.s_k}, {ks_}')
            else: l.append(f's_sub_u32 s{op.s_k}, s{op.s_k}, {-ks_}')
        return l
    def ndma(self): return sum(op.nper for op in self.ops)
    def note_vm(self, n):
        self.vm += [-1] * n
    def run(self, nsteps, mfmas, acc_init=True, pre_issue=None, first_wait_extra=0, tail_hook=None, kind=32):
        A = self.A; NS = self.NS; nd = self.ndma()
        NSUB = 4 if kind == 32 else 2; RD = READ32 if kind == 32 else READ16; AW = 16 if kind == 32 else 4
        OPC = 'v_mfma_f32_32x32x16_bf16' if kind == 32 else 'v_mfma_f32_16x16x32_bf16'
        getm = mfmas if callable(mfmas) else (lambda step: mfmas)
        keys = []
        for (acc, mk, nk) in getm(0):
            for k in (mk, nk):
                if k not in keys: keys.append(k)
        F = [{k: self.cx.va.alloc(4, 2) for k in [(o.name, t) for (o, t) in keys]} for _ in range(2)]
        def reads(step, buf, ks, fs):
            st = buf // self.per_set; so = (buf % self.per_set) * self.SB
            out = []; seen = []
            for (acc, mk, nk) in getm(step):
                for (o, t) in (mk, nk):
                    if (o.name, t) in seen: continue
                    seen.append((o.name, t))
                    for ins in RD[o.kind](o, st, so, ks, t, F[fs][(o.name, t)]): out.append(((o.name, t), ins))
            return out
        pre = min(NS, nsteps)
        first = self.stage_dma(0)
        for x in first: A(x)
        if self.stamp_issue: A(self.stamp_issue)
        if pre_issue: pre_issue()
        rest = []
        for s in range(1, pre): rest += self.stage_dma(s)
        n1 = len(self.stage_dma(1)) if pre > 1 else 0
        for x in rest[:n1]: A(x)
        pend = rest[n1:]
        issued = 1 + (1 if pre > 1 else 0)
        self.vm = [0] * nd + [-1] * first_wait_extra + ([1] * nd if pre > 1 else [])
        vm = self.vm
        def emit_dma(x, stage_of):
            A(x)
            if x.startswith('buffer_load'): vm.append(stage_of)
        pend = [(x, 2 + i // n1) for i, x in enumerate(pend)] if pend else []
        def wait_stage(s):
            idx = max(i for i, v in enumerate(vm) if v == s)
            A(f's_waitcnt vmcnt({len(vm) - 1 - idx})')
        wait_stage(0)
        A('s_barrier')
        if self.stamp_first: A(self.stamp_first)
        out = []
        for (k, ins) in reads(0, 0, 0, 0):
            A(ins); out.append((k, 0))
        started = set()
        for i in range(nsteps):
            b = i % NS
            for ks in range(NSUB):
                fs = (i * NSUB + ks) & 1; fn = fs ^ 1
                ml = getm(i)
                last_sub = (ks == NSUB - 1)
                rd = []
                need_barrier = last_sub and i + 1 < nsteps
                if not last_sub: rd = reads(i, b, ks + 1, fn)
                elif i + 1 < nsteps: rd = reads(i + 1, (i + 1) % NS, 0, fn)
                nm = len(ml)
                ndm = (len(pend) + (NSUB - 2 - ks)) // (NSUB - 1 - ks) if not last_sub else 0
                slots = [[] for _ in range(nm)]
                did_barrier = False
                for j, (acc, mk, nk) in enumerate(ml):
                    need = [(mk[0].name, mk[1]), (nk[0].name, nk[1])]
                    idx = -1
                    for q, (k, f) in enumerate(out):
                        if f == fs and k in need: idx = q
                    if idx >= 0:
                        A(f's_waitcnt lgkmcnt({min(15, len(out) - 1 - idx)})')
                        out = out[idx + 1:]
                    srcc = '0' if (acc_init and acc not in started) else vr(acc, AW)
                    started.add(acc)
                    A(f'{OPC} {vr(acc, AW)}, {vr(F[fs][need[0]], 4)}, {vr(F[fs][need[1]], 4)}, {srcc}')
                    if j == 0 and need_barrier:
                        if out:
                            A('s_waitcnt lgkmcnt(0)'); out = []
                        wait_stage(i + 1)
                        A('s_barrier')
                        if i + NS < nsteps:
                            assert not pend, 'pending dma at barrier'
                            pend = [(x, i + NS) for x in self.stage_dma(i + NS)]
                        ndm = (len(pend) + NSUB - 1) // NSUB
                    nr = (len(rd) + (nm - 1 - j)) // max(1, nm - j) if j < nm else 0
                    if j < nm - 1:
                        take = (len(rd) + (nm - 2 - j)) // max(1, (nm - 1 - j))
                    else:
                        take = len(rd)
                    for (k, ins) in rd[:take]:
                        A(ins); out.append((k, fn))
                    rd = rd[take:]
                    if j >= nm // 2 or nm <= 2:
                        rem = nm - j
                        tk = (ndm + rem - 1) // rem
                        for _ in range(tk):
                            if pend and ndm > 0:
                                x, sof = pend.pop(0); emit_dma(x, sof); ndm -= 1
                if tail_hook: tail_hook(i, ks)
        assert not pend
```

```python
import sys
from g2lib import *

KA = dict(x=0, cs=8, ss=16, cd=24, sd=32, bx=40, win=48, wsp=56, bsp=64, wout=72, out=80, dbg=88, ws=96)
WS_XN  = 0x0000000
WS_F   = 0x0300000
FSTR   = 0x80000
WS_G   = 0x0500000
GSTR   = 0x80000
GP     = 352 * 16
WS_Z1  = 0x0800000
WS_Z2  = 0x0C00000
ZP     = 2048 * 16
WS_H0  = 0x1000000
WS_H1  = 0x1400000
WS_WOT = 0x1800000
WP     = 640 * 16
WS_UV  = 0x1A00000
UVP    = 512 * 16
UVSTR  = 0x60000
UVROW  = 352 * 4
WS_Y1K = 0x1E00000
WS_XCH = 0x1F00000
XCH_BYTES = 16 * 14 * 128 * 8

A = Asm()
launches = []; descs = []

def wave_sum(A, v, t0):
    for mod in ['quad_perm:[1,0,3,2]', 'quad_perm:[2,3,0,1]', 'row_half_mirror', 'row_mirror']:
        A('s_nop 1')
        A(f'v_add_f32_dpp v{v}, v{v}, v{v} {mod} row_mask:0xf bank_mask:0xf')
    A(f'v_mov_b32 v{t0}, v{v}')
    A('s_nop 1')
    A(f'v_permlane16_swap_b32 v{v}, v{t0}')
    A('s_nop 1')
    A(f'v_add_f32 v{v}, v{v}, v{t0}')
    A(f'v_mov_b32 v{t0}, v{v}')
    A('s_nop 1')
    A(f'v_permlane32_swap_b32 v{v}, v{t0}')
    A('s_nop 1')
    A(f'v_add_f32 v{v}, v{v}, v{t0}')

def wave_sum2(A, va, vb, ta, tb):
    A('s_nop 1')
    for mod in ['quad_perm:[1,0,3,2]', 'quad_perm:[2,3,0,1]', 'row_half_mirror', 'row_mirror']:
        A(f'v_add_f32_dpp v{va}, v{va}, v{va} {mod} row_mask:0xf bank_mask:0xf')
        A(f'v_add_f32_dpp v{vb}, v{vb}, v{vb} {mod} row_mask:0xf bank_mask:0xf')
        A('s_nop 0')
    for ins in ['v_permlane16_swap_b32', 'v_permlane32_swap_b32']:
        A(f'v_mov_b32 v{ta}, v{va}')
        A(f'v_mov_b32 v{tb}, v{vb}')
        A('s_nop 0')
        A(f'{ins} v{va}, v{ta}')
        A(f'{ins} v{vb}, v{tb}')
        A('s_nop 0')
        A(f'v_add_f32 v{va}, v{va}, v{ta}')
        A(f'v_add_f32 v{vb}, v{vb}, v{tb}')
    A('s_nop 0')

def gen_p0():
    name = 'p0_kernel'
    A.raw(kernel_header(name))
    A('s_cmp_ge_u32 s2, 256\ns_cbranch_scc1 P0_end')
    A(f's_load_dwordx2 s[4:5], s[0:1], {KA["x"]}')
    A(f's_load_dwordx2 s[6:7], s[0:1], {KA["ws"]}')
    A(f's_load_dwordx2 s[28:29], s[0:1], {KA["win"]}')
    lane, wave = 1, 2
    A('v_and_b32 v1, 63, v0')
    A('v_lshrrev_b32 v2, 6, v0')
    A('s_nop 0')
    A('v_readfirstlane_b32 s20, v2')
    A('s_lshr_b32 s21, s20, 1')
    A('s_lshl_b32 s22, s2, 1')
    A('s_add_u32 s22, s22, s21')
    A('s_and_b32 s23, s20, 1')
    A('s_sub_u32 s24, 2048, s22')
    A('s_sub_u32 s25, 1024, s22')
    A('s_add_u32 s26, 1024, s22')
    A('s_cmp_eq_u32 s23, 0')
    A('s_cselect_b32 s30, s22, s25')
    A('s_cselect_b32 s31, s24, s26')
    A('s_lshl_b32 s27, s23, 10')
    A('s_add_u32 s27, s27, 512')
    A('s_cmp_eq_u32 s22, 0')
    A('s_cselect_b32 s31, s27, s31')
    A('s_mul_i32 s30, s30, 1280')
    A('s_mul_i32 s31, s31, 1280')
    A('v_lshlrev_b32 v3, 2, v1')
    A('s_waitcnt lgkmcnt(0)')
    srd(A, 8, 4, 0, 2048 * 1280)
    for k in range(5): A(f'buffer_load_dword v{10+k}, v3, s[8:11], s30 offen offset:{256*k}')
    for k in range(5): A(f'buffer_load_dword v{15+k}, v3, s[8:11], s31 offen offset:{256*k}')
    srd(A, 32, 28, 0, 640 * 3456)
    A('s_mul_i32 s36, s2, 68*128')
    A('v_lshlrev_b32 v4, 7, v0')
    A('v_cmp_gt_u32 vcc, 68, v0')
    A('s_and_saveexec_b64 s[38:39], vcc')
    A('s_cbranch_execz P0_nopf')
    A('buffer_load_dword v9, v4, s[32:35], s36 offen')
    A('P0_nopf:')
    A('s_mov_b64 exec, s[38:39]')
    srd(A, 12, 6, WS_XN, 2048 * 1280)
    srd(A, 16, 6, WS_F, 4 * FSTR)
    srd(A, 40, 6, WS_XCH, XCH_BYTES)
    A('v_mov_b32 v20, -1\nv_mov_b32 v21, -1\nv_mov_b32 v22, -1\nv_mov_b32 v23, -1')
    A('v_lshlrev_b32 v5, 4, v0')
    A('s_mul_i32 s37, s2, 896')
    A('v_cmp_gt_u32 vcc, 56, v0')
    A('s_and_saveexec_b64 s[38:39], vcc')
    A('s_cbranch_execz P0_nosent')
    A('buffer_store_dwordx4 v[20:23], v5, s[40:43], s37 offen')
    A('P0_nosent:')
    A('s_mov_b64 exec, s[38:39]')
    A('v_mov_b32 v20, 0\nv_mov_b32 v21, 0\nv_mov_b32 v22, 0\nv_mov_b32 v23, 0')
    A(f'v_add_u32 v5, {8*2560}, v5')
    A('v_cmp_gt_u32 vcc, 160, v0')
    A('s_and_saveexec_b64 s[38:39], vcc')
    A('ds_write_b128 v5, v[20:23]')
    A('s_mov_b64 exec, s[38:39]')
    A('s_waitcnt vmcnt(0)')
    for k in range(5):
        A(f'v_lshlrev_b32 v{30+2*k}, 16, v{10+k}')
        A(f'v_and_b32 v{31+2*k}, 0xffff0000, v{10+k}')
        A(f'v_lshlrev_b32 v{40+2*k}, 16, v{15+k}')
        A(f'v_and_b32 v{41+2*k}, 0xffff0000, v{15+k}')
    A('v_add_f32 v6, v30, v31\nv_add_f32 v7, v40, v41')
    for k in range(2, 10):
        A(f'v_add_f32 v6, v6, v{30+k}\nv_add_f32 v7, v7, v{40+k}')
    wave_sum2(A, 6, 7, 8, 9)
    inv = hex(f2u(1.0 / 640))
    A(f'v_mul_f32 v6, {inv}, v6\nv_mul_f32 v7, {inv}, v7')
    for k in range(10):
        A(f'v_sub_f32 v{30+k}, v{30+k}, v6\nv_sub_f32 v{40+k}, v{40+k}, v7')
    A('v_mul_f32 v6, v30, v30\nv_mul_f32 v7, v40, v40')
    for k in range(1, 10):
        A(f'v_fmac_f32 v6, v{30+k}, v{30+k}\nv_fmac_f32 v7, v{40+k}, v{40+k}')
    wave_sum2(A, 6, 7, 8, 9)
    A(f'v_mov_b32 v8, 0x3727c5ac\nv_mov_b32 v9, 0x3727c5ac')
    A(f'v_fmac_f32 v8, {inv}, v6\nv_fmac_f32 v9, {inv}, v7')
    A('v_rsq_f32 v8, v8\nv_rsq_f32 v9, v9')
    A('s_nop 0')
    for k in range(10):
        A(f'v_mul_f32 v{30+k}, v{30+k}, v8\nv_mul_f32 v{40+k}, v{40+k}, v9')
    A('v_lshlrev_b32 v4, 3, v1')
    A('s_mul_i32 s33, s20, 2*2560')
    A('v_add_u32 v4, s33, v4')
    for k in range(5):
        A(f'ds_write_b64 v4, v[{30+2*k}:{31+2*k}] offset:{512*k}')
        A(f'ds_write_b64 v4, v[{40+2*k}:{41+2*k}] offset:{2560 + 512*k}')
    for k in range(5):
        A(f'v_cvt_pk_bf16_f32 v{10+k}, v{30+2*k}, v{31+2*k}')
        A(f'v_cvt_pk_bf16_f32 v{15+k}, v{40+2*k}, v{41+2*k}')
    for k in range(5): A(f'buffer_store_dword v{10+k}, v3, s[12:15], s30 offen offset:{256*k}')
    for k in range(5): A(f'buffer_store_dword v{15+k}, v3, s[12:15], s31 offen offset:{256*k}')
    A('s_waitcnt lgkmcnt(0)')
    A('s_barrier')
    A('v_cmp_gt_u32 vcc, 192, v0')
    A('s_and_saveexec_b64 s[38:39], vcc')
    A('s_cbranch_execz P0_done')
    A('v_lshlrev_b32 v4, 1, v0')
    A('v_add_u32 v5, 1, v4')
    A('v_cmp_ge_u32 vcc, 320, v4\ns_nop 1\nv_cndmask_b32 v50, 0, 1.0, vcc')
    A('v_cmp_ge_u32 vcc, 320, v5\ns_nop 1\nv_cndmask_b32 v51, 0, 1.0, vcc')
    A('v_subrev_u32 v6, 1, v4')
    A('v_cmp_ge_u32 vcc, 318, v6\ns_nop 1\nv_cndmask_b32 v52, 0, 1.0, vcc')
    A('v_cmp_ge_u32 vcc, 318, v4\ns_nop 1\nv_cndmask_b32 v53, 0, 1.0, vcc')
    A('v_lshlrev_b32 v54, 2, v4')
    A('v_sub_u32 v55, 640, v4')
    A('v_min_u32 v55, 639, v55')
    A('v_lshlrev_b32 v55, 2, v55')
    A('v_sub_u32 v56, 639, v4')
    A('v_lshlrev_b32 v56, 2, v56')
    A('s_mov_b32 s49, 0')
    A('P0_vg:')
    A('s_lshl_b32 s44, s49, 2')
    A('s_mul_i32 s44, s44, 2560')
    A('s_add_u32 s45, s44, 2560\ns_add_u32 s46, s44, 2*2560\ns_add_u32 s47, s44, 3*2560')
    A('s_lshl_b32 s48, s2, 1\ns_add_u32 s48, s48, s49')
    A('s_cmp_lg_u32 s2, 0\ns_cbranch_scc1 P0_nospecial')
    A('s_cmp_eq_u32 s49, 1\ns_cbranch_scc1 P0_nospecial')
    A('s_cmp_eq_u32 s49, 0')
    A('s_cbranch_scc0 P0_sp2')
    A(f's_mov_b32 s45, {8*2560}\ns_mov_b32 s47, {8*2560}')
    A('s_branch P0_nospecial')
    A('P0_sp2:')
    A(f's_mov_b32 s44, {1*2560}\ns_mov_b32 s45, {3*2560}\ns_mov_b32 s46, {8*2560}\ns_mov_b32 s47, {8*2560}\ns_mov_b32 s48, 512')
    A('P0_nospecial:')
    for r in range(4):
        A(f'v_add_u32 v57, s{44+r}, v54')
        A(f'ds_read_b64 v[{60+2*r}:{61+2*r}], v57')
        A(f'v_add_u32 v57, s{44+r}, v55')
        A(f'ds_read_b32 v{70+2*r}, v57')
        A(f'v_add_u32 v57, s{44+r}, v56')
        A(f'ds_read_b32 v{71+2*r}, v57')
    A('s_waitcnt lgkmcnt(0)')
    for base, dst in ((60, 80), (70, 90)):
        for e in range(2):
            y = [base + 2*r + e for r in range(4)]
            a, b, c_, d_ = 100, 101, 102, 103
            A(f'v_add_f32 v{a}, v{y[0]}, v{y[1]}')
            A(f'v_add_f32 v{b}, v{y[2]}, v{y[3]}')
            A(f'v_sub_f32 v{c_}, v{y[0]}, v{y[1]}')
            A(f'v_sub_f32 v{d_}, v{y[2]}, v{y[3]}')
            A(f'v_add_f32 v{dst+0+e}, v{a}, v{b}')
            A(f'v_sub_f32 v{dst+2+e}, v{a}, v{b}')
            A(f'v_sub_f32 v{dst+4+e}, v{c_}, v{d_}')
            A(f'v_add_f32 v{dst+6+e}, v{c_}, v{d_}')
    for e in range(2):
        m1 = 50 + e; m2 = 52 + e
        for arr in range(2):
            A(f'v_mul_f32 v{80+2*arr+e}, v{80+2*arr+e}, v{m1}')
            A(f'v_fmac_f32 v{80+2*arr+e}, v{90+2*arr+e}, v{m2}')
        for arr in range(2, 4):
            A(f'v_sub_f32 v{80+2*arr+e}, v{80+2*arr+e}, v{90+2*arr+e}')
            A(f'v_mul_f32 v{80+2*arr+e}, v{80+2*arr+e}, v{m2}')
    A('s_mul_i32 s50, s48, 768')
    A('v_lshlrev_b32 v57, 2, v0')
    for arr in range(4):
        A(f'v_cvt_pk_bf16_f32 v{100+arr}, v{80+2*arr}, v{81+2*arr}')
    for arr in range(4):
        A(f's_add_u32 s51, s50, {arr*FSTR}')
        A(f'buffer_store_dword v{100+arr}, v57, s[16:19], s51 offen')
    A('s_add_u32 s49, s49, 1')
    A('s_cmp_eq_u32 s2, 0\ns_cselect_b32 s51, 3, 2')
    A('s_cmp_lt_u32 s49, s51\ns_cbranch_scc1 P0_vg')
    A('P0_done:')
    A('s_waitcnt vmcnt(0)')
    A('P0_end:\ns_endpgm')
    launches.append((name, 256, 256, 9 * 2560)); descs.append((name, 104, 64))

C1 = -2.0 * math.sqrt(2.0 / math.pi) * math.log2(math.e); C3 = C1 * 0.044715

def gelu_pk(A, base, n, tmp, vc1, sc3, sone):
    P = range(0, n, 2)
    for i in P: A(f'v_pk_mul_f32 {vr(tmp+i,2)}, {vr(base+i,2)}, {vr(base+i,2)}')
    for i in P: A(f'v_pk_fma_f32 {vr(tmp+i,2)}, {vr(tmp+i,2)}, {sr(sc3,2)}, {vr(vc1,2)}')
    for i in P: A(f'v_pk_mul_f32 {vr(tmp+i,2)}, {vr(base+i,2)}, {vr(tmp+i,2)}')
    for i in range(n): A(f'v_exp_f32 v{tmp+i}, v{tmp+i}')
    for i in P: A(f'v_pk_add_f32 {vr(tmp+i,2)}, {vr(tmp+i,2)}, {sr(sone,2)}')
    for i in range(n): A(f'v_rcp_f32 v{tmp+i}, v{tmp+i}')
    for i in P: A(f'v_pk_mul_f32 {vr(base+i,2)}, {vr(base+i,2)}, {vr(tmp+i,2)}')

def pack_swap(A, src16, dst8):
    for q in range(4):
        A(f'v_cvt_pk_bf16_f32 v{dst8 + 2*q}, v{src16 + 4*q}, v{src16 + 4*q + 1}')
        A(f'v_cvt_pk_bf16_f32 v{dst8 + 2*q + 1}, v{src16 + 4*q + 2}, v{src16 + 4*q + 3}')
    A('s_nop 1')
    for j in range(2):
        b = dst8 + 4 * j
        A(f'v_permlane32_swap_b32 v{b}, v{b + 2}')
        A(f'v_permlane32_swap_b32 v{b + 1}, v{b + 3}')

STORE_FL = 'sc1'

def gen_p1():
    name = 'p1_kernel'
    A.raw(kernel_header(name))
    A('s_cmp_ge_u32 s2, 256\ns_cbranch_scc1 P1_end')
    for i, k in enumerate(['win', 'ws', 'cd', 'sd', 'wout']):
        A(f's_load_dwordx2 s[{4+2*i}:{5+2*i}], s[0:1], {KA[k]}')
    A('s_and_b32 s14, s2, 7\ns_lshr_b32 s15, s2, 3')
    A('s_cmp_ge_u32 s15, 27\ns_cbranch_scc1 P1_dft')
    A('s_cmp_eq_u32 s15, 26\ns_cbranch_scc1 P1_dbl')
    hi = []
    for variant in ('std', 'dbl'):
        if variant == 'dbl': A('P1_dbl:')
        cx = Ctx(A); cx.init_ids(16)
        NS = 3
        if variant == 'std':
            A('s_and_b32 s17, s15, 1\ns_lshl_b32 s18, s14, 1\ns_add_u32 s17, s17, s18')
            A('s_lshr_b32 s18, s15, 1')
            A('s_lshl_b32 s19, s17, 7')
            A('s_lshl_b32 s20, s18, 1')
            MT, NT = 128, 128
        else:
            A('s_mov_b32 s18, 13')
            A('s_lshl_b32 s19, s14, 8')
            A('s_mov_b32 s20, 26')
            MT, NT = 64, 256
        opm = Operand('w', 'RC', MT, 0, 24, 32, 64 * 3456)
        opn = Operand('x', 'KC', NT, MT * 128, 28, 33, 128)
        SB = (MT + NT) * 128
        A('s_lshl_b32 s21, s20, 6')
        def addr_w(vk, vp, d):
            t = cx.t
            A(f'v_mul_u32_u24 v{d}, 3456, v{vk}')
            A(f'v_lshrrev_b32 v{t[3]}, 3, v{vp}')
            A(f'v_lshl_add_u32 v{d}, v{t[3]}, 6, v{d}')
            A(f'v_and_b32 v{t[3]}, 3, v{vp}')
            A(f'v_lshl_add_u32 v{d}, v{t[3]}, 4, v{d}')
            A(f'v_bfe_u32 v{t[3]}, v{vp}, 2, 1')
            A(f'v_xor_b32 v{t[3]}, 1, v{t[3]}')
            A(f'v_mul_u32_u24 v{t[3]}, 1728, v{t[3]}')
            A(f'v_add3_u32 v{d}, v{d}, v{t[3]}, s21')
        setup_rc_dma(A, cx, opm, addr_w)
        A('s_mul_i32 s22, s19, 1280')
        def addr_x(vrow, vch, d):
            A(f'v_mul_u32_u24 v{d}, 1280, v{vrow}')
            A(f'v_lshl_add_u32 v{d}, v{vch}, 4, v{d}')
            A(f'v_add_u32 v{d}, s22, v{d}')
        setup_kc_dma(A, cx, opn, addr_x)
        A(f's_mul_i32 s34, s16, {opm.nper*1024}\ns_mul_i32 s35, s16, {opn.nper*1024}')
        A('s_mov_b32 s32, 0\ns_mov_b32 s33, 0')
        A('s_waitcnt lgkmcnt(0)')
        srd(A, 24, 4, 0, 640 * 3456)
        srd(A, 28, 6, WS_XN, 2048 * 1280)
        lp = Loop(A, cx, [opm, opn], SB, NS, 0, {'w': 34, 'x': 35})
        vm0 = cx.va.alloc(); vn0 = cx.va.alloc()
        def post_setup():
            if variant == 'std':
                A(f'v_lshrrev_b32 v{vm0}, 1, v{cx.wave}\nv_lshlrev_b32 v{vm0}, 1, v{vm0}')
                A(f'v_and_b32 v{vn0}, 1, v{cx.wave}\nv_lshlrev_b32 v{vn0}, 6, v{vn0}')
            else:
                A(f'v_mov_b32 v{vm0}, 0')
                A(f'v_lshlrev_b32 v{vn0}, 6, v{cx.wave}')
            setup_rc_read32(A, cx, opm, vm0, 2, lp.nsets, lp.setsize, 0)
            setup_kc_read32(A, cx, opn, vn0, lp.nsets, lp.setsize, 0)
        acc = [[cx.va.alloc(16, 4) for _ in range(2)] for _ in range(2)]
        mf = [(acc[mi][ni], (opm, mi), (opn, ni)) for (mi, ni) in [(0, 0), (0, 1), (1, 0), (1, 1)]]
        lp.run(10, mf, pre_issue=post_setup)
        va = cx.va; t = cx.t
        vc1 = va.alloc(2, 2); tmp = va.alloc(32, 2); pk = va.alloc(8, 4)
        A(f'v_mov_b32 v{vc1}, {hex(f2u(C1))}\nv_mov_b32 v{vc1+1}, {hex(f2u(C1))}')
        A(f's_mov_b32 s36, {hex(f2u(C3))}\ns_mov_b32 s37, {hex(f2u(C3))}\ns_mov_b32 s38, 1.0\ns_mov_b32 s39, 1.0')
        srd(A, 24, 6, WS_XCH, XCH_BYTES)
        srd(A, 28, 6, WS_Z1, 108 * ZP)
        srd(A, 40, 6, WS_Z2, 108 * ZP)
        A('s_nop 7')
        st_s = [va.alloc(), va.alloc()]; st_q = [va.alloc(), va.alloc()]
        for ni in range(2):
            a0 = acc[0][ni]
            gelu_pk(A, a0, 16, tmp, vc1, 36, 38)
            A(f'v_pk_add_f32 {vr(tmp,2)}, {vr(a0,2)}, {vr(a0+2,2)}')
            A(f'v_pk_mul_f32 {vr(tmp+2,2)}, {vr(a0,2)}, {vr(a0,2)}')
            A(f'v_pk_fma_f32 {vr(tmp+2,2)}, {vr(a0+2,2)}, {vr(a0+2,2)}, {vr(tmp+2,2)}')
            for i in range(4, 16, 2):
                A(f'v_pk_add_f32 {vr(tmp,2)}, {vr(tmp,2)}, {vr(a0+i,2)}')
                A(f'v_pk_fma_f32 {vr(tmp+2,2)}, {vr(a0+i,2)}, {vr(a0+i,2)}, {vr(tmp+2,2)}')
            A(f'v_add_f32 v{st_s[ni]}, v{tmp}, v{tmp+1}')
            A(f'v_add_f32 v{st_q[ni]}, v{tmp+2}, v{tmp+3}')
        for v in st_s + st_q:
            A(f'v_mov_b32 v{tmp}, v{v}')
            A('s_nop 1')
            A(f'v_permlane32_swap_b32 v{v}, v{tmp}')
            A('s_nop 1')
            A(f'v_add_f32 v{v}, v{v}, v{tmp}')
        A('s_barrier')
        A(f'v_and_b32 v{t[0]}, 31, v{cx.lane}')
        A(f'v_add_u32 v{t[0]}, v{t[0]}, v{vn0}')
        A(f'v_lshlrev_b32 v{t[0]}, 3, v{t[0]}')
        if variant == 'std':
            A(f'v_lshrrev_b32 v{t[1]}, 1, v{cx.wave}')
            A(f'v_lshl_add_u32 v{t[1]}, v{t[1]}, 10, v{t[0]}')
            for ni in range(2):
                A(f'v_mov_b32 v{tmp}, v{st_s[ni]}\nv_mov_b32 v{tmp+1}, v{st_q[ni]}')
                A(f'ds_write_b64 v{t[1]}, {vr(tmp,2)} offset:{256*ni}')
            A('s_waitcnt lgkmcnt(0)\ns_barrier')
            A(f'v_lshlrev_b32 v{t[2]}, 3, v0')
            A(f'ds_read_b64 {vr(tmp,2)}, v{t[2]}\nds_read_b64 {vr(tmp+2,2)}, v{t[2]} offset:1024')
            A('s_mul_i32 s44, s17, 14\ns_add_u32 s44, s44, s18\ns_lshl_b32 s44, s44, 10')
            A('s_waitcnt lgkmcnt(0)')
            A(f'v_pk_add_f32 {vr(tmp,2)}, {vr(tmp,2)}, {vr(tmp+2,2)}')
            A('v_cmp_gt_u32 vcc, 128, v0')
            A('s_and_saveexec_b64 s[46:47], vcc')
            A(f'buffer_store_dwordx2 {vr(tmp,2)}, v{t[2]}, s[24:27], s44 offen sc1')
            A('s_mov_b64 exec, s[46:47]')
        else:
            for ni in range(2):
                A(f'v_add_u32 v{t[1]}, {256*ni}, v{t[0]}')
                A(f'v_lshrrev_b32 v{t[2]}, 10, v{t[1]}')
                A(f'v_mul_u32_u24 v{t[2]}, {14*1024}, v{t[2]}')
                A(f'v_and_b32 v{t[1]}, 1023, v{t[1]}')
                A(f'v_add_u32 v{t[1]}, v{t[1]}, v{t[2]}')
                A(f's_mul_i32 s44, s14, {2*14*1024}\ns_add_u32 s44, s44, {13*1024}')
                A(f'v_mov_b32 v{tmp}, v{st_s[ni]}\nv_mov_b32 v{tmp+1}, v{st_q[ni]}')
                A('v_cmp_gt_u32 vcc, 32, v' + str(cx.lane))
                A('s_and_saveexec_b64 s[46:47], vcc')
                A(f'buffer_store_dwordx2 {vr(tmp,2)}, v{t[1]}, s[24:27], s44 offen sc1')
                A('s_mov_b64 exec, s[46:47]')
                A('s_nop 1')
        az = va.alloc()
        A(f'v_lshrrev_b32 v{t[0]}, 5, v{cx.lane}')
        A(f'v_lshrrev_b32 v{t[1]}, 1, v{vm0}')
        A(f'v_lshl_add_u32 v{t[0]}, v{t[1]}, 2, v{t[0]}')
        A(f'v_lshlrev_b32 v{az}, 15, v{t[0]}')
        A(f'v_and_b32 v{t[0]}, 31, v{cx.lane}')
        A(f'v_add_u32 v{t[0]}, v{t[0]}, v{vn0}')
        A(f'v_lshl_add_u32 v{az}, v{t[0]}, 4, v{az}')
        A(f's_lshl_b32 s45, s20, 17')
        A(f's_lshl_b32 s48, s19, 4')
        A(f's_add_u32 s45, s45, s48')
        for ni in range(2):
            a0 = acc[1][ni]
            gelu_pk(A, a0, 16, tmp, vc1, 36, 38)
            pack_swap(A, a0, pk)
            for j in range(2):
                A(f's_add_u32 s48, s45, {2*j*ZP}')
                A(f'buffer_store_dwordx4 {vr(pk+4*j,4)}, v{az}, s[28:31], s48 offen offset:{512*ni} {STORE_FL}')
            A('s_nop 1')
        lab = A.label('poll')
        if variant == 'std':
            A(f'v_and_b32 v{t[0]}, 127, v0\nv_lshlrev_b32 v{t[0]}, 3, v{t[0]}')
            A(f'v_lshrrev_b32 v{t[1]}, 7, v0\nv_mul_u32_u24 v{t[1]}, {7*1024}, v{t[1]}\nv_add_u32 v{t[0]}, v{t[0]}, v{t[1]}')
            A(f's_mul_i32 s44, s17, {14*1024}')
            nld = 7
        else:
            A(f'v_and_b32 v{t[0]}, 127, v0\nv_lshlrev_b32 v{t[0]}, 3, v{t[0]}')
            A(f'v_lshrrev_b32 v{t[1]}, 7, v0\nv_mul_u32_u24 v{t[1]}, {14*1024}, v{t[1]}\nv_add_u32 v{t[0]}, v{t[0]}, v{t[1]}')
            A(f's_mul_i32 s44, s14, {2*14*1024}')
            nld = 14
        A('s_mov_b32 s49, 0')
        A(f'{lab}:')
        for k in range(nld):
            o = 1024 * k
            if o < 4096: A(f'buffer_load_dwordx2 {vr(tmp+2*k,2)}, v{t[0]}, s[24:27], s44 offen offset:{o} sc1')
            else:
                A(f's_add_u32 s48, s44, {o - o % 4096}')
                A(f'buffer_load_dwordx2 {vr(tmp+2*k,2)}, v{t[0]}, s[24:27], s48 offen offset:{o % 4096} sc1')
        A('s_waitcnt vmcnt(0)')
        A(f'v_cmp_ne_u32 vcc, -1, v{tmp}')
        for k in range(1, nld):
            A(f'v_cmp_ne_u32 s[46:47], -1, v{tmp+2*k}')
            A('s_and_b64 vcc, vcc, s[46:47]')
        A('s_add_u32 s49, s49, 1')
        A('s_cmp_eq_u64 vcc, exec')
        lab2 = A.label('polldone')
        A(f's_cbranch_scc1 {lab2}')
        A('s_cmp_lt_u32 s49, 20000')
        A(f's_cbranch_scc1 {lab}')
        A(f'{lab2}:')
        for k in range(1, nld): A(f'v_pk_add_f32 {vr(tmp,2)}, {vr(tmp,2)}, {vr(tmp+2*k,2)}')
        A(f'v_lshlrev_b32 v{t[1]}, 3, v0')
        A(f'ds_write_b64 v{t[1]}, {vr(tmp,2)} offset:4096')
        A('s_waitcnt lgkmcnt(0)\ns_barrier')
        A(f'v_and_b32 v{t[0]}, 31, v{cx.lane}\nv_add_u32 v{t[0]}, v{t[0]}, v{vn0}\nv_lshlrev_b32 v{t[0]}, 3, v{t[0]}')
        for ni in range(2):
            A(f'ds_read_b64 {vr(tmp+4*ni,2)}, v{t[0]} offset:{4096 + 256*ni}')
            if variant == 'std': A(f'ds_read_b64 {vr(tmp+4*ni+2,2)}, v{t[0]} offset:{4096 + 1024 + 256*ni}')
        A('s_waitcnt lgkmcnt(0)')
        inv = hex(f2u(1.0 / 864))
        rs = [va.alloc(2, 2), va.alloc(2, 2)]; nm = [va.alloc(2, 2), va.alloc(2, 2)]
        for ni in range(2):
            b = tmp + 4 * ni
            if variant == 'std': A(f'v_pk_add_f32 {vr(b,2)}, {vr(b,2)}, {vr(b+2,2)}')
            A(f'v_mul_f32 v{b}, {inv}, v{b}')
            A(f'v_mul_f32 v{b+1}, {inv}, v{b+1}')
            A(f'v_fma_f32 v{b+1}, -v{b}, v{b}, v{b+1}')
            A(f'v_max_f32 v{b+1}, 0, v{b+1}')
            A(f'v_add_f32 v{b+1}, 0x3727c5ac, v{b+1}')
            A(f'v_rsq_f32 v{rs[ni]}, v{b+1}')
            A('s_nop 0')
            A(f'v_mov_b32 v{rs[ni]+1}, v{rs[ni]}')
            A(f'v_mul_f32 v{nm[ni]}, v{b}, v{rs[ni]}')
            A(f'v_sub_f32 v{nm[ni]}, 0, v{nm[ni]}')
            A(f'v_mov_b32 v{nm[ni]+1}, v{nm[ni]}')
        for ni in range(2):
            a0 = acc[0][ni]
            for i in range(0, 16, 2): A(f'v_pk_fma_f32 {vr(a0+i,2)}, {vr(a0+i,2)}, {vr(rs[ni],2)}, {vr(nm[ni],2)}')
            pack_swap(A, a0, pk)
            for j in range(2):
                A(f's_add_u32 s48, s45, {2*j*ZP}')
                A(f'buffer_store_dwordx4 {vr(pk+4*j,4)}, v{az}, s[40:43], s48 offen offset:{512*ni} {STORE_FL}')
            A('s_nop 1')
        A('s_waitcnt vmcnt(0)\ns_endpgm')
        hi.append(cx.va.high)
    A('P1_dft:')
    cx = Ctx(A); cx.init_ids(16)
    A('s_sub_u32 s17, s15, 27\ns_lshl_b32 s17, s17, 3\ns_add_u32 s17, s17, s14')
    A('s_mul_i32 s18, s17, 205\ns_lshr_b32 s18, s18, 11')
    A('s_mul_i32 s19, s18, 10\ns_sub_u32 s19, s17, s19')
    A('s_and_b32 s20, s19, 1\ns_lshr_b32 s19, s19, 1')
    opm = Operand('f', 'KC', 128, 0, 24, 32, 128)
    opn = Operand('c', 'KC', 192, 128 * 128, 28, 33, 128)
    SB = (128 + 192) * 128
    A('s_mul_i32 s21, s19, 128*768')
    def addr_f(vrow, vch, d):
        A(f'v_mul_u32_u24 v{d}, 768, v{vrow}')
        A(f'v_lshl_add_u32 v{d}, v{vch}, 4, v{d}')
        A(f'v_add_u32 v{d}, s21, v{d}')
    setup_kc_dma(A, cx, opm, addr_f)
    A('s_mul_i32 s22, s20, 160*1280')
    def addr_c(vrow, vch, d):
        A(f'v_mul_u32_u24 v{d}, 1280, v{vrow}')
        A(f'v_lshl_add_u32 v{d}, v{vch}, 4, v{d}')
        A(f'v_add_u32 v{d}, s22, v{d}')
    setup_kc_dma(A, cx, opn, addr_c)
    A(f's_mul_i32 s34, s16, {opm.nper*1024}\ns_mul_i32 s35, s16, {opn.nper*1024}')
    A('s_mov_b32 s32, 0\ns_mov_b32 s33, 0')
    A('s_waitcnt lgkmcnt(0)')
    A(f's_mul_i32 s36, s18, {FSTR}\ns_add_u32 s36, s36, {WS_F}')
    A(f's_add_u32 s24, s6, s36\ns_addc_u32 s25, s7, 0\ns_mov_b32 s26, {513*768}\ns_mov_b32 s27, 0x20000')
    A('s_cmp_ge_u32 s18, 2')
    A('s_cselect_b32 s28, s10, s8\ns_cselect_b32 s29, s11, s9')
    A(f's_mov_b32 s30, {640*1280}\ns_mov_b32 s31, 0x20000')
    lp = Loop(A, cx, [opm, opn], SB, 3, 0, {'f': 34, 'c': 35})
    vm0 = cx.va.alloc(); vn0 = cx.va.alloc()
    def post_setup2():
        A(f'v_lshrrev_b32 v{vm0}, 1, v{cx.wave}\nv_lshlrev_b32 v{vm0}, 6, v{vm0}')
        A(f'v_and_b32 v{vn0}, 1, v{cx.wave}\nv_mul_u32_u24 v{vn0}, 96, v{vn0}')
        setup_kc_read32(A, cx, opm, vm0, lp.nsets, lp.setsize, 0)
        setup_kc_read32(A, cx, opn, vn0, lp.nsets, lp.setsize, 0)
    acc = [[cx.va.alloc(16, 4) for _ in range(3)] for _ in range(2)]
    mf = [(acc[mi][ni], (opm, mi), (opn, ni)) for (mi, ni) in [(0, 0), (0, 1), (1, 0), (0, 2), (1, 1), (1, 2)]]
    lp.run(6, mf, pre_issue=post_setup2)
    va = cx.va; t = cx.t
    pk = va.alloc(8, 4); az = va.alloc()
    A(f's_mul_i32 s36, s18, {GSTR}\ns_add_u32 s36, s36, {WS_G}')
    A(f's_add_u32 s24, s6, s36\ns_addc_u32 s25, s7, 0\ns_mov_b32 s26, {80*GP}\ns_mov_b32 s27, 0x20000')
    A(f'v_lshrrev_b32 v{t[0]}, 5, v{cx.lane}')
    A(f'v_lshrrev_b32 v{t[1]}, 3, v{vm0}')
    A(f'v_add_u32 v{t[0]}, v{t[0]}, v{t[1]}')
    A(f'v_mul_u32_u24 v{az}, {GP}, v{t[0]}')
    A(f'v_and_b32 v{t[0]}, 31, v{cx.lane}\nv_add_u32 v{t[0]}, v{t[0]}, v{vn0}')
    A(f'v_lshl_add_u32 v{az}, v{t[0]}, 4, v{az}')
    A(f's_mul_i32 s37, s19, {16*GP}\ns_mul_i32 s38, s20, {160*16}\ns_add_u32 s37, s37, s38')
    A('s_nop 7')
    alt = [va.alloc() for _ in range(3)]
    for ni in range(3):
        A(f'v_sub_f32 v{alt[ni]}, v{acc[0][ni]}, v{acc[0][ni]+1}')
        for mi in range(2):
            for r in range(0, 16, 2):
                if mi == 0 and r == 0: continue
                A(f'v_add_f32 v{alt[ni]}, v{alt[ni]}, v{acc[mi][ni]+r}')
                A(f'v_sub_f32 v{alt[ni]}, v{alt[ni]}, v{acc[mi][ni]+r+1}')
    for mi in range(2):
        for ni in range(3):
            pack_swap(A, acc[mi][ni], pk)
            for j in range(2):
                A(f's_add_u32 s38, s37, {(4*mi + 2*j)*GP}')
                A(f'buffer_store_dwordx4 {vr(pk+4*j,4)}, v{az}, s[24:27], s38 offen offset:{512*ni} {STORE_FL}')
            A('s_nop 1')
    A('s_cmp_lg_u32 s18, 0\ns_cbranch_scc1 P1_dft_noalt')
    srd(A, 28, 6, WS_Y1K, 10 * UVROW)
    for ni in range(3):
        A(f'v_mov_b32 v{pk}, v{alt[ni]}')
        A('s_nop 1')
        A(f'v_permlane32_swap_b32 v{alt[ni]}, v{pk}')
        A('s_nop 1')
        A(f'v_add_f32 v{alt[ni]}, v{alt[ni]}, v{pk}')
    A(f'v_lshrrev_b32 v{t[1]}, 6, v{vm0}')
    A(f'v_mul_u32_u24 v{t[1]}, {UVROW}, v{t[1]}')
    A(f'v_and_b32 v{t[0]}, 31, v{cx.lane}\nv_add_u32 v{t[0]}, v{t[0]}, v{vn0}')
    A(f'v_lshl_add_u32 v{t[1]}, v{t[0]}, 2, v{t[1]}')
    A(f's_mul_i32 s37, s19, {2*UVROW}\ns_mul_i32 s38, s20, {160*4}\ns_add_u32 s37, s37, s38')
    A(f'v_cmp_gt_u32 vcc, 32, v{cx.lane}')
    A('s_and_saveexec_b64 s[46:47], vcc')
    for ni in range(3):
        A(f'buffer_store_dword v{alt[ni]}, v{t[1]}, s[28:31], s37 offen offset:{128*ni}')
    A('s_mov_b64 exec, s[46:47]')
    A('P1_dft_noalt:')
    srd(A, 24, 12, 0, 864 * 1280)
    srd(A, 28, 6, WS_WOT, 108 * WP)
    A('s_mul_i32 s37, s17, 864')
    for rd in range(4):
        task = t[0]
        A(f'v_add_u32 v{task}, s37, v0')
        if rd: A(f'v_add_u32 v{task}, {256*rd}, v{task}')
        A(f'v_mul_u32_u24 v{t[1]}, 52429, v{task}')
        A(f'v_lshrrev_b32 v{t[1]}, 24, v{t[1]}')
        A(f'v_mul_u32_u24 v{t[2]}, 320, v{t[1]}')
        A(f'v_sub_u32 v{t[2]}, v{task}, v{t[2]}')
        A(f'v_mul_u32_u24 v{t[3]}, {8*1280}, v{t[1]}')
        A(f'v_lshl_add_u32 v{t[3]}, v{t[2]}, 2, v{t[3]}')
        if rd == 3:
            A(f'v_cmp_gt_u32 vcc, {864 - 768}, v0')
            A('s_and_saveexec_b64 s[46:47], vcc')
            A('s_cbranch_execz P1_tr_done')
        src = pk
        for k in range(8):
            o = 1280 * k
            if o < 4096: A(f'buffer_load_dword v{src+k}, v{t[3]}, s[24:27], 0 offen offset:{o}')
            else:
                A(f's_mov_b32 s38, {o - o % 4096 if False else (o // 2560) * 2560}')
                A(f'buffer_load_dword v{src+k}, v{t[3]}, s[24:27], s38 offen offset:{o - (o // 2560) * 2560}')
        A(f'v_mul_u32_u24 v{t[4]}, {WP}, v{t[1]}')
        A(f'v_lshl_add_u32 v{t[4]}, v{t[2]}, 5, v{t[4]}')
        A('s_waitcnt vmcnt(0)')
        dst = acc[0][0]
        A('s_mov_b32 s38, 0x05040100\ns_mov_b32 s39, 0x07060302')
        for k in range(4):
            A(f'v_perm_b32 v{dst+k}, v{src+2*k+1}, v{src+2*k}, s38')
            A(f'v_perm_b32 v{dst+4+k}, v{src+2*k+1}, v{src+2*k}, s39')
        A(f'buffer_store_dwordx4 {vr(dst,4)}, v{t[4]}, s[28:31], 0 offen {STORE_FL}')
        A(f'buffer_store_dwordx4 {vr(dst+4,4)}, v{t[4]}, s[28:31], 0 offen offset:16 {STORE_FL}')
        A('s_nop 1')
    A('P1_tr_done:')
    A('s_waitcnt vmcnt(0)')
    A('P1_end:\ns_endpgm')
    hi.append(cx.va.high)
    launches.append((name, 256, 256, 3 * 320 * 128)); descs.append((name, max(hi), 64))

def gen_p2():
    name = 'p2_kernel'
    A.raw(kernel_header(name))
    A('s_cmp_ge_u32 s2, 256\ns_cbranch_scc1 P2_end')
    for i, k in enumerate(['wsp', 'ws', 'cs', 'ss', 'bsp']):
        A(f's_load_dwordx2 s[{4+2*i}:{5+2*i}], s[0:1], {KA[k]}')
    A('s_and_b32 s14, s2, 7\ns_lshr_b32 s15, s2, 3')
    A('s_cmp_ge_u32 s15, 28\ns_cbranch_scc1 P2_dft')
    hi = []
    cx = Ctx(A); cx.init_ids(16)
    A('s_and_b32 s17, s14, 1')
    A('s_lshr_b32 s18, s14, 1\ns_lshl_b32 s18, s18, 2')
    A('s_mul_i32 s19, s15, 37\ns_lshr_b32 s19, s19, 8')
    A('s_add_u32 s18, s18, s19')
    A('s_mul_i32 s19, s19, 7\ns_sub_u32 s19, s15, s19')
    opm = Operand('z', 'RP', 128, 0, 24, 32, 64 * 16)
    opn = Operand('w', 'KC', 128, 16384, 28, 33, 128)
    SB = 32768
    A(f's_lshl_b32 s20, s19, 19')
    def addr_z(vk, vp, d):
        A(f'v_lshlrev_b32 v{d}, 15, v{vp}')
        A(f'v_lshl_add_u32 v{d}, v{vk}, 4, v{d}')
        A(f'v_add_u32 v{d}, s20, v{d}')
    setup_rp_dma(A, cx, opm, addr_z)
    A('s_lshl_b32 s21, s18, 19')
    def addr_w(vrow, vch, d):
        A(f'v_lshlrev_b32 v{d}, 12, v{vrow}')
        A(f'v_lshl_add_u32 v{d}, v{vch}, 4, v{d}')
        A(f'v_add_u32 v{d}, s21, v{d}')
    setup_kc_dma(A, cx, opn, addr_w)
    A(f's_mul_i32 s34, s16, {opm.nper*1024}\ns_mul_i32 s35, s16, {opn.nper*1024}')
    A('s_lshl_b32 s32, s17, 14\ns_lshl_b32 s33, s17, 11')
    A('s_waitcnt lgkmcnt(0)')
    srd(A, 24, 6, WS_Z2, 108 * ZP)
    srd(A, 28, 4, 0, 2048 * 4096)
    lp = Loop(A, cx, [opm, opn], SB, 3, 0, {'z': 34, 'w': 35})
    vm0 = cx.va.alloc(); vn0 = cx.va.alloc()
    va = cx.va; t = cx.t
    az = va.alloc(); z1r = va.alloc(32, 4); bias = [va.alloc(), va.alloc()]
    def post_setup():
        A(f'v_lshrrev_b32 v{vm0}, 1, v{cx.wave}\nv_lshlrev_b32 v{vm0}, 1, v{vm0}')
        A(f'v_and_b32 v{vn0}, 1, v{cx.wave}\nv_lshlrev_b32 v{vn0}, 6, v{vn0}')
        setup_rp_read32(A, cx, opm, vm0, 2, lp.nsets, lp.setsize, 0)
        setup_kc_read32(A, cx, opn, vn0, lp.nsets, lp.setsize, 0)
        A(f'v_lshrrev_b32 v{t[0]}, 5, v{cx.lane}')
        A(f'v_lshl_add_u32 v{t[0]}, v{vm0}, 2, v{t[0]}')
        A(f'v_lshlrev_b32 v{az}, 15, v{t[0]}')
        A(f'v_and_b32 v{t[0]}, 31, v{cx.lane}\nv_add_u32 v{t[0]}, v{t[0]}, v{vn0}')
        A(f'v_lshl_add_u32 v{az}, v{t[0]}, 4, v{az}')
        A(f's_lshl_b32 s45, s18, 11\ns_add_u32 s45, s45, s20')
        srd(A, 36, 6, WS_Z1, 108 * ZP)
        srd(A, 40, 12, 0, 4096)
        A(f's_mul_i32 s48, s17, {WS_H1 - WS_H0}\ns_add_u32 s48, s48, {WS_H0}')
        A(f's_add_u32 s52, s6, s48\ns_addc_u32 s53, s7, 0\ns_mov_b32 s54, {108*ZP}\ns_mov_b32 s55, 0x20000')
    def tail(i, ks):
        if i == 14 and ks == 0:
            for mi in range(2):
                for ni in range(2):
                    for j in range(2):
                        A(f's_add_u32 s48, s45, {(4*mi + 2*j)*ZP}')
                        A(f'buffer_load_dwordx4 {vr(z1r + 16*mi + 8*ni + 4*j, 4)}, v{az}, s[36:39], s48 offen offset:{512*ni}')
            A(f'v_and_b32 v{t[0]}, 31, v{cx.lane}\nv_add_u32 v{t[0]}, v{t[0]}, v{vn0}')
            A(f's_lshl_b32 s48, s18, 7')
            A(f'v_add_u32 v{t[0]}, s48, v{t[0]}\nv_lshlrev_b32 v{t[0]}, 1, v{t[0]}')
            A(f'buffer_load_ushort v{bias[0]}, v{t[0]}, s[40:43], 0 offen')
            A(f'buffer_load_ushort v{bias[1]}, v{t[0]}, s[40:43], 0 offen offset:64')
            lp.note_vm(10)
    acc = [[va.alloc(16, 4) for _ in range(2)] for _ in range(2)]
    mf = [(acc[mi][ni], (opm, mi), (opn, ni)) for (mi, ni) in [(0, 0), (0, 1), (1, 0), (1, 1)]]
    lp.run(16, mf, pre_issue=post_setup, tail_hook=tail)
    pk = va.alloc(8, 4); tz = va.alloc(16, 2); bp = [va.alloc(2, 2), va.alloc(2, 2)]
    A('s_waitcnt vmcnt(0)')
    A('s_cmp_eq_u32 s17, 1\ns_cselect_b32 s48, -1, 0')
    for ni in range(2):
        A(f'v_lshlrev_b32 v{bp[ni]}, 16, v{bias[ni]}')
        A(f'v_and_b32 v{bp[ni]}, s48, v{bp[ni]}')
        A(f'v_mov_b32 v{bp[ni]+1}, v{bp[ni]}')
    for mi in range(2):
        for ni in range(2):
            zz = z1r + 16*mi + 8*ni
            for j in range(2):
                b = zz + 4*j
                A(f'v_permlane32_swap_b32 v{b}, v{b + 2}')
                A(f'v_permlane32_swap_b32 v{b + 1}, v{b + 3}')
            A('s_nop 0')
            for q in range(8):
                A(f'v_lshlrev_b32 v{tz + 2*q}, 16, v{zz + q}')
                A(f'v_and_b32 v{tz + 2*q + 1}, 0xffff0000, v{zz + q}')
            a0 = acc[mi][ni]
            for q in range(0, 16, 2):
                A(f'v_pk_add_f32 {vr(a0+q,2)}, {vr(a0+q,2)}, {vr(bp[ni],2)}')
            for q in range(0, 16, 2):
                A(f'v_pk_mul_f32 {vr(a0+q,2)}, {vr(a0+q,2)}, {vr(tz+q,2)}')
            pack_swap(A, a0, pk)
            for j in range(2):
                A(f's_add_u32 s48, s45, {(4*mi + 2*j)*ZP}')
                A(f'buffer_store_dwordx4 {vr(pk+4*j,4)}, v{az}, s[52:55], s48 offen offset:{512*ni} {STORE_FL}')
            A('s_nop 1')
    A('s_waitcnt vmcnt(0)\ns_endpgm')
    hi.append(va.high)
    A('P2_dft:')
    cx = Ctx(A); cx.init_ids(16)
    va = cx.va; t = cx.t
    A('s_sub_u32 s17, s15, 28\ns_lshl_b32 s17, s17, 3\ns_add_u32 s17, s17, s14')
    A('s_lshr_b32 s18, s17, 4')
    A('s_lshr_b32 s19, s17, 2\ns_and_b32 s19, s19, 3')
    A('s_and_b32 s20, s17, 3')
    KST = 9
    opm = Operand('g', 'KC', 96, 0, (lambda st: 24 if st < KST else 36), 32, (lambda st: 8 * GP if st != KST - 1 else 8 * GP - KST * 8 * GP))
    opn = Operand('c', 'KC', 128, 96 * 128, (lambda st: 28 if st < KST else 40), 33, (lambda st: 128 if st != KST - 1 else 128 - KST * 128))
    SB = (96 + 128) * 128
    A(f's_mul_i32 s21, s20, {80*16}')
    def addr_g(vrow, vch, d):
        A(f'v_mul_u32_u24 v{d}, {GP}, v{vch}')
        A(f'v_lshl_add_u32 v{d}, v{vrow}, 4, v{d}')
        A(f'v_add_u32 v{d}, s21, v{d}')
    setup_kc_dma(A, cx, opm, addr_g)
    A('s_lshl_b32 s22, s19, 8\ns_add_u32 s22, s22, s18\ns_lshl_b32 s22, s22, 12')
    def addr_c(vrow, vch, d):
        A(f'v_lshlrev_b32 v{d}, 13, v{vrow}')
        A(f'v_lshl_add_u32 v{d}, v{vch}, 4, v{d}')
        A(f'v_add_u32 v{d}, s22, v{d}')
    setup_kc_dma(A, cx, opn, addr_c)
    A(f's_mul_i32 s34, s16, {opm.nper*1024}\ns_mul_i32 s35, s16, {opn.nper*1024}')
    A('s_mov_b32 s32, 0\ns_mov_b32 s33, 0')
    A('s_waitcnt lgkmcnt(0)')
    A(f's_mul_i32 s48, s18, {GSTR}\ns_add_u32 s48, s48, {WS_G}')
    A(f's_add_u32 s24, s6, s48\ns_addc_u32 s25, s7, 0\ns_mov_b32 s26, {80*GP}\ns_mov_b32 s27, 0x20000')
    A(f's_add_u32 s48, s48, {2*GSTR}')
    A(f's_add_u32 s36, s6, s48\ns_addc_u32 s37, s7, 0\ns_mov_b32 s38, {80*GP}\ns_mov_b32 s39, 0x20000')
    srd(A, 28, 8, 0, 2048 * 4096)
    srd(A, 40, 10, 0, 2048 * 4096)
    lp = Loop(A, cx, [opm, opn], SB, 4, 0, {'g': 34, 'c': 35})
    vm0 = va.alloc(); vn0 = va.alloc()
    def post_setup2():
        A(f'v_mov_b32 v{vm0}, 0')
        A(f'v_lshlrev_b32 v{vn0}, 5, v{cx.wave}')
        setup_kc_read32(A, cx, opm, vm0, lp.nsets, lp.setsize, 0)
        setup_kc_read32(A, cx, opn, vn0, lp.nsets, lp.setsize, 0)
    accP = [va.alloc(16, 4) for _ in range(3)]; accQ = [va.alloc(16, 4) for _ in range(3)]
    lp.run(2 * KST, (lambda step: [((accP if step < KST else accQ)[mi], (opm, mi), (opn, 0)) for mi in range(3)]), pre_issue=post_setup2)
    pk = va.alloc(8, 4); az = va.alloc(); tu = va.alloc(16, 4)
    A(f'v_lshrrev_b32 v{t[0]}, 5, v{cx.lane}')
    A(f'v_lshlrev_b32 v{az}, 13, v{t[0]}')
    A(f'v_and_b32 v{t[0]}, 31, v{cx.lane}\nv_add_u32 v{t[0]}, v{t[0]}, v{vn0}')
    A(f'v_lshl_add_u32 v{az}, v{t[0]}, 4, v{az}')
    A(f's_mul_i32 s44, s20, {10*UVP}\ns_lshl_b32 s45, s19, 11\ns_add_u32 s44, s44, s45')
    A(f's_mul_i32 s45, s18, {UVSTR}\ns_add_u32 s44, s44, s45')
    srd(A, 24, 6, WS_UV, 4 * UVSTR)
    A('s_nop 7')
    for mi in range(3):
        for q in range(0, 16, 2):
            A(f'v_pk_add_f32 {vr(tu+q,2)}, {vr(accP[mi]+q,2)}, {vr(accQ[mi]+q,2)} neg_lo:[0,1] neg_hi:[0,1]')
        pack_swap(A, tu, pk)
        for j in range(2):
            A(f's_add_u32 s48, s44, {(4*mi + 2*j)*UVP}')
            A(f'buffer_store_dwordx4 {vr(pk+4*j,4)}, v{az}, s[24:27], s48 offen {STORE_FL}')
        A('s_nop 1')
        for q in range(0, 16, 2):
            A(f'v_pk_add_f32 {vr(tu+q,2)}, {vr(accP[mi]+q,2)}, {vr(accQ[mi]+q,2)}')
        pack_swap(A, tu, pk)
        for j in range(2):
            A(f's_add_u32 s48, s44, {(4*mi + 2*j)*UVP + 2*UVSTR}')
            A(f'buffer_store_dwordx4 {vr(pk+4*j,4)}, v{az}, s[24:27], s48 offen {STORE_FL}')
        A('s_nop 1')
    A('s_cmp_lg_u32 s17, 0\ns_cbranch_scc1 P2_fin')
    srd(A, 28, 6, WS_Y1K, 11 * UVROW)
    for rd in range(2):
        A(f'v_add_u32 v{t[0]}, {256*rd}, v0\nv_lshlrev_b32 v{t[0]}, 2, v{t[0]}')
        if rd == 1:
            A(f'v_cmp_le_u32 vcc, {352*4}, v{t[0]}\ns_nop 1')
            A(f'v_mov_b32 v{t[1]}, 0x40000000')
            A(f'v_cndmask_b32 v{t[0]}, v{t[0]}, v{t[1]}, vcc')
        for k in range(10):
            A(f's_mov_b32 s48, {k*UVROW}')
            A(f'buffer_load_dword v{tu+k}, v{t[0]}, s[28:31], s48 offen')
        A('s_waitcnt vmcnt(0)')
        for k in range(1, 10): A(f'v_add_f32 v{tu}, v{tu}, v{tu+k}')
        A(f's_mov_b32 s48, {10*UVROW}')
        A(f'buffer_store_dword v{tu}, v{t[0]}, s[28:31], s48 offen')
        A('s_nop 1')
    A('P2_fin:')
    A('s_waitcnt vmcnt(0)')
    A('P2_end:\ns_endpgm')
    hi.append(va.high)
    launches.append((name, 256, 256, 4 * 28672)); descs.append((name, max(hi), 64))

def gen_p3():
    name = 'p3_kernel'
    A.raw(kernel_header(name))
    A('s_cmp_ge_u32 s2, 256\ns_cbranch_scc1 P3_end')
    for i, k in enumerate(['x', 'ws', 'out']):
        A(f's_load_dwordx2 s[{4+2*i}:{5+2*i}], s[0:1], {KA[k]}')
    cx = Ctx(A); cx.init_ids(16)
    va = cx.va; t = cx.t
    A('s_and_b32 s14, s2, 7\ns_lshr_b32 s15, s2, 3')
    A('s_lshl_b32 s17, s14, 2\ns_lshr_b32 s18, s15, 3\ns_add_u32 s17, s17, s18')
    A('s_and_b32 s18, s15, 7')
    op0 = Operand('h0', 'KC', 64, 0, 24, 32, 8 * ZP)
    op1 = Operand('h1', 'KC', 64, 8192, 28, 32, 0)
    opw = Operand('w', 'KC', 96, 16384, 36, 33, 8 * WP)
    SB = 16384 + 12288
    A('s_lshl_b32 s20, s17, 10')
    def addr_h(vrow, vch, d):
        A(f'v_lshlrev_b32 v{d}, 15, v{vch}')
        A(f'v_lshl_add_u32 v{d}, v{vrow}, 4, v{d}')
        A(f'v_add_u32 v{d}, s20, v{d}')
    setup_kc_dma(A, cx, op0, addr_h)
    op1.voffs = op0.voffs
    A(f's_mul_i32 s21, s18, {80*16}')
    def addr_w(vrow, vch, d):
        A(f'v_mul_u32_u24 v{d}, {WP}, v{vch}')
        A(f'v_lshl_add_u32 v{d}, v{vrow}, 4, v{d}')
        A(f'v_add_u32 v{d}, s21, v{d}')
        A(f'v_cmp_le_u32 vcc, 80, v{vrow}')
        A('s_nop 1')
        A(f'v_cndmask_b32 v{d}, v{d}, v{vbig}, vcc')
    vbig = va.alloc()
    A(f'v_mov_b32 v{vbig}, 0x40000000')
    setup_kc_dma(A, cx, opw, addr_w)
    A(f's_mul_i32 s34, s16, {op0.nper*1024}\ns_mul_i32 s35, s16, {opw.nper*1024}')
    A('s_mov_b32 s32, 0\ns_mov_b32 s33, 0')
    A('s_waitcnt lgkmcnt(0)')
    srd(A, 24, 6, WS_H0, 108 * ZP)
    srd(A, 28, 6, WS_H1, 108 * ZP)
    srd(A, 36, 6, WS_WOT, 108 * WP)
    lp = Loop(A, cx, [op0, op1, opw], SB, 4, 0, {'h0': 34, 'h1': 34, 'w': 35})
    vm0 = va.alloc(); vn0 = va.alloc()
    NR = 3
    xr = [va.alloc(4, 4) for _ in range(NR)]; ua = [va.alloc(4, 4) for _ in range(NR)]; ub = [va.alloc(4, 4) for _ in range(NR)]
    aout = [va.alloc() for _ in range(NR)]; alds = [va.alloc() for _ in range(NR)]; amir = [va.alloc() for _ in range(NR)]; arow = [va.alloc() for _ in range(NR)]
    def post_setup():
        A(f'v_mov_b32 v{vm0}, 0')
        A(f'v_lshlrev_b32 v{vn0}, 4, v{cx.wave}')
        setup_kc_read16(A, cx, opw, vm0, lp.nsets, lp.setsize, 0)
        setup_kc_read16(A, cx, op0, vn0, lp.nsets, lp.setsize, 0)
        setup_kc_read16(A, cx, op1, vn0, lp.nsets, lp.setsize, 0)
        srd(A, 40, 4, 0, 2048 * 1280)
        srd(A, 44, 8, 0, 2048 * 1280)
        srd(A, 48, 6, WS_UV, 4 * UVSTR)
        srd(A, 52, 6, WS_Y1K, 11 * UVROW)
        A(f's_mov_b32 s57, {10*UVROW}')
        for rd in range(NR):
            A(f'v_add_u32 v{t[0]}, {256*rd}, v0')
            A(f'v_mul_u32_u24 v{t[1]}, 6554, v{t[0]}\nv_lshrrev_b32 v{t[1]}, 16, v{t[1]}')
            A(f'v_mul_u32_u24 v{t[2]}, 10, v{t[1]}\nv_sub_u32 v{t[2]}, v{t[0]}, v{t[2]}')
            A(f'v_mul_u32_u24 v{alds[rd]}, {LROW}, v{t[1]}\nv_lshl_add_u32 v{alds[rd]}, v{t[2]}, 5, v{alds[rd]}')
            A(f's_lshl_b32 s56, s17, 6')
            A(f'v_add_u32 v{arow[rd]}, s56, v{t[1]}')
            A(f's_mul_i32 s56, s18, 10')
            A(f'v_add_u32 v{t[2]}, s56, v{t[2]}')
            A(f'v_mul_u32_u24 v{aout[rd]}, 1280, v{arow[rd]}\nv_lshl_add_u32 v{aout[rd]}, v{t[2]}, 4, v{aout[rd]}')
            if rd == NR - 1:
                A(f'v_cmp_le_u32 vcc, 640, v{t[0]}\ns_nop 1\nv_cndmask_b32 v{aout[rd]}, v{aout[rd]}, v{vbig}, vcc')
            A(f'v_sub_u32 v{t[3]}, 2048, v{arow[rd]}')
            A(f'v_cmp_lt_u32 vcc, 1024, v{arow[rd]}\ns_nop 1')
            A(f'v_cndmask_b32 v{t[3]}, v{arow[rd]}, v{t[3]}, vcc')
            A(f'v_cndmask_b32 v{t[4]}, 0, 1, vcc')
            A(f'v_cmp_le_u32 vcc, 40, v{t[2]}\ns_nop 1')
            A(f'v_cndmask_b32 v{amir[rd]}, 0, 1, vcc')
            A(f'v_sub_u32 v{t[5]}, 80, v{t[2]}')
            A(f'v_cndmask_b32 v{t[2]}, v{t[2]}, v{t[5]}, vcc')
            A(f'v_xor_b32 v{t[4]}, v{t[4]}, v{amir[rd]}')
            A(f'v_and_b32 v{t[5]}, 1, v{t[3]}')
            A(f'v_lshl_add_u32 v{t[4]}, v{t[4]}, 1, v{t[5]}')
            A(f'v_mul_u32_u24 v{t[4]}, {UVSTR}, v{t[4]}')
            A(f'v_lshl_add_u32 v{t[4]}, v{t[2]}, 13, v{t[4]}')
            A(f'v_lshrrev_b32 v{t[3]}, 1, v{t[3]}')
            A(f'v_lshl_add_u32 v{t[4]}, v{t[3]}, 4, v{t[4]}')
            A(f'buffer_load_dwordx4 {vr(xr[rd],4)}, v{aout[rd]}, s[40:43], 0 offen')
            A(f'buffer_load_dwordx4 {vr(ub[rd],4)}, v{t[4]}, s[48:51], 0 offen')
            A(f'v_subrev_u32 v{t[4]}, {UVP}, v{t[4]}')
            A(f'buffer_load_dwordx4 {vr(ua[rd],4)}, v{t[4]}, s[48:51], 0 offen')
        A(f'v_subrev_u32 v{t[0]}, {1024*1280}, v{aout[0]}\nv_lshrrev_b32 v{t[0]}, 1, v{t[0]}')
        A(f'v_cmp_eq_u32 vcc, 1024, v{arow[0]}')
        for i in range(8):
            A(f'v_add_u32 v{t[1]}, {i}, v{t[0]}')
            A(f'v_sub_u32 v{t[2]}, 640, v{t[1]}')
            A(f'v_min_u32 v{t[1]}, v{t[1]}, v{t[2]}')
            A(f'v_lshlrev_b32 v{t[1]}, 2, v{t[1]}')
            A(f'v_cndmask_b32 v{t[1]}, v{vbig}, v{t[1]}, vcc')
            A(f'buffer_load_dword v{y1k+i}, v{t[1]}, s[52:55], s57 offen')
    LROW = 336
    y1k = va.alloc(8, 4)
    acc = [va.alloc(4, 4) for _ in range(5)]
    mf = [(acc[mi], (opw, mi), (op0, 0)) for mi in range(5)] + [(acc[mi], (opw, mi), (op1, 0)) for mi in range(5)]
    lp.run(14, mf, pre_issue=post_setup, kind=16, first_wait_extra=3*NR + 8)
    A('s_nop 7')
    A('s_barrier')
    A(f'v_and_b32 v{t[0]}, 15, v{cx.lane}\nv_add_u32 v{t[0]}, v{t[0]}, v{vn0}')
    A(f'v_mul_u32_u24 v{t[0]}, {LROW}, v{t[0]}')
    A(f'v_lshrrev_b32 v{t[1]}, 4, v{cx.lane}\nv_lshl_add_u32 v{t[0]}, v{t[1]}, 4, v{t[0]}')
    for mi in range(5): A(f'ds_write_b128 v{t[0]}, {vr(acc[mi],4)} offset:{64*mi}')
    A('s_waitcnt lgkmcnt(0)\ns_barrier')
    f8 = va.alloc(8, 4); y8 = va.alloc(8, 4); pk = va.alloc(4, 4)
    for rd in range(NR):
        A(f'ds_read_b128 {vr(f8,4)}, v{alds[rd]}\nds_read_b128 {vr(f8+4,4)}, v{alds[rd]} offset:16')
        if rd == 0: A('s_waitcnt vmcnt(0)')
        a_, b_ = ua[rd], ub[rd]
        A('s_mov_b32 s56, 0x07060100')
        A(f'v_perm_b32 v{pk}, v{a_+3}, v{b_}, s56')
        A(f'v_perm_b32 v{pk+1}, v{a_+2}, v{a_+3}, s56')
        A(f'v_perm_b32 v{pk+2}, v{a_+1}, v{a_+2}, s56')
        A(f'v_perm_b32 v{pk+3}, v{a_}, v{a_+1}, s56')
        A(f'v_cmp_eq_u32 vcc, 1, v{amir[rd]}\ns_nop 1')
        for k in range(4): A(f'v_cndmask_b32 v{pk+k}, v{b_+k}, v{pk+k}, vcc')
        for k in range(4):
            A(f'v_lshlrev_b32 v{y8+2*k}, 16, v{pk+k}')
            A(f'v_and_b32 v{y8+2*k+1}, 0xffff0000, v{pk+k}')
        if rd == 0:
            A(f'v_cmp_eq_u32 vcc, 1024, v{arow[0]}\ns_nop 1')
            for i in range(8): A(f'v_cndmask_b32 v{y8+i}, v{y8+i}, v{y1k+i}, vcc')
        A('s_waitcnt lgkmcnt(0)')
        for k in range(0, 8, 2): A(f'v_pk_add_f32 {vr(f8+k,2)}, {vr(f8+k,2)}, {vr(y8+k,2)}')
        xx = xr[rd]
        for k in range(4):
            A(f'v_lshlrev_b32 v{y8+2*k}, 16, v{xx+k}')
            A(f'v_and_b32 v{y8+2*k+1}, 0xffff0000, v{xx+k}')
        for k in range(0, 8, 2): A(f'v_pk_add_f32 {vr(f8+k,2)}, {vr(f8+k,2)}, {vr(y8+k,2)}')
        for k in range(4): A(f'v_cvt_pk_bf16_f32 v{pk+k}, v{f8+2*k}, v{f8+2*k+1}')
        A(f'buffer_store_dwordx4 {vr(pk,4)}, v{aout[rd]}, s[44:47], 0 offen')
        A('s_nop 1')
    A('s_waitcnt vmcnt(0)')
    A('P3_end:\ns_endpgm')
    launches.append((name, 256, 256, 4 * SB)); descs.append((name, va.high, 64))

def finish(path):
    out = ''
    for (n, g, b, l) in launches: out += f'; @launch kernel={n} grid=({g},1,1) block=({b},1,1) lds={l}\n'
    out += '.amdgcn_target "amdgcn-amd-amdhsa--gfx950"\n.text\n' + A.text()
    out += '.section .rodata,"a"\n'
    for (n, v, s) in descs: out += '.p2align 6\n' + kernel_desc(n, v, s)
    open(path, 'w').write(out)
    print('generated', path, descs)

if __name__ == '__main__':
    gen_p0()
    gen_p1()
    gen_p2()
    gen_p3()
    finish(sys.argv[1])
```
